```python
import torch

def _softmax(x, axis=-1):
    return torch.softmax(x, dim=axis)
def _gelu(x):
    return torch.nn.functional.gelu(x, approximate="tanh")
def _silu(x):
    return torch.nn.functional.silu(x)
def _sigmoid(x):
    return torch.sigmoid(x)
def _layernorm(x, axis=-1, eps=1e-5):
    m = x.mean(dim=axis, keepdim=True)
    v = x.var(dim=axis, keepdim=True, unbiased=False)
    return (x - m) / torch.sqrt(v + eps)
def _scatter_add(tgt, idx, src, axis=0):
    return tgt.clone().index_add_(axis, idx, src)
def _segment_sum(src, seg, n):
    out = torch.zeros((n,) + src.shape[1:], dtype=src.dtype)
    return out.index_add_(0, seg, src)
def _pad(x, pw):
    flat = tuple(v for pair in reversed(pw) for v in pair)
    return torch.nn.functional.pad(x, flat)

kernel_name = 'recurrent_scan__sliding_block_cached__dense_activation_gelu__decode'

def setup_inputs():

    _w = (lambda a: (lambda t: t.to(torch.bfloat16) if t.is_floating_point() else t)(torch.as_tensor(a)))
    def _A_setup():
        B, Sq, D = 8, 1, 512
        Hq, Hkv, Sk, Dh = 32, 8, 4096, 128
        assert Hq % Hkv == 0, (Hq, Hkv)
        return {
            "x": _w((lambda *s: torch.randn(*s, dtype=torch.bfloat16) * 0.05)(B, Sq, D)),
            "k_cache": _w((lambda *s: torch.randn(*s, dtype=torch.bfloat16) * 3.2)(B, Hkv, Sk, Dh)),
            "v_cache": _w((lambda *s: torch.randn(*s, dtype=torch.bfloat16) * 3.2)(B, Hkv, Sk, Dh)),
            "wq": _w((lambda *s: torch.randn(*s, dtype=torch.bfloat16) * 3.2)(D, Hq * Dh) * (D ** -0.5)),
            "wo": _w((lambda *s: torch.randn(*s, dtype=torch.bfloat16) * 3.2)(Hq * Dh, D) * ((Hq * Dh) ** -0.5)),
        }
    _A_in = _A_setup()

    def _B_setup():
        B, S, D, F = 8, 1, 512, 1792
        return {
            "x": _w((lambda *s: torch.randn(*s, dtype=torch.bfloat16) * 0.05)(B, S, D)),
            "w1": _w((lambda *s: torch.randn(*s, dtype=torch.bfloat16) * 3.2)(D, F) * (D ** -0.5)),
            "b1": _w((lambda *s: torch.randn(*s, dtype=torch.bfloat16) * 3.2)(F) * 0.01),
            "w2": _w((lambda *s: torch.randn(*s, dtype=torch.bfloat16) * 0.4)(F, D) * (F ** -0.5)),
            "b2": _w((lambda *s: torch.randn(*s, dtype=torch.bfloat16) * 0.4)(D) * 0.01),
        }
    _B_in = _B_setup()

    return {
        "A_x": _A_in["x"],
        "A_k_cache": _A_in["k_cache"],
        "A_v_cache": _A_in["v_cache"],
        "A_wq": _A_in["wq"],
        "A_wo": _A_in["wo"],
        "B_x": _B_in["x"],
        "B_w1": _B_in["w1"],
        "B_b1": _B_in["b1"],
        "B_w2": _B_in["w2"],
        "B_b2": _B_in["b2"],
    }

def reference(A_x, A_k_cache, A_v_cache, A_wq, A_wo, B_x, B_w1, B_b1, B_w2, B_b2):
    def _A_ref(x, k_cache, v_cache, wq, wo):
        B, Sq, D = x.shape
        Hq, Dh = 32, 128
        Hkv, Sk = k_cache.shape[1], k_cache.shape[2]
        W = min(4096, max(256, Sk // 4))
        rep = Hq // Hkv
        q = (lambda x, *d: x.permute(*d))((x @ wq).reshape(B, Sq, Hq, Dh), 0, 2, 1, 3)
        k = (lambda x, n, axis: torch.repeat_interleave(x, n, dim=axis))(k_cache[:, :, Sk - W:, :], rep, axis=1)
        v = (lambda x, n, axis: torch.repeat_interleave(x, n, dim=axis))(v_cache[:, :, Sk - W:, :], rep, axis=1)
        scores = torch.einsum("bhqd,bhkd->bhqk", q, k) * (Dh ** -0.5)
        p = _softmax(scores, axis=-1)
        o = torch.einsum("bhqk,bhkd->bhqd", p, v)
        return (lambda x, *d: x.permute(*d))(o, 0, 2, 1, 3).reshape(B, Sq, Hq * Dh) @ wo

    def _B_ref(x, w1, b1, w2, b2):
        h = torch.einsum("bsd,df->bsf", x, w1) + b1
        h = _gelu(h)
        return torch.einsum("bsf,fd->bsd", h, w2) + b2

    x = A_x
    xn = _layernorm(x, axis=-1)
    s = _A_ref(xn, A_k_cache, A_v_cache, A_wq, A_wo)
    g = _silu(_B_ref(xn, B_w1, B_b1, B_w2, B_b2))
    return x + s * g
```

```python
NAME = "recurrent_scan__sliding_block_cached__dense_activation_gelu__decode"

HEADER = open("cdna_kernels/" + NAME + ".s.ref").read().split("; Override launch geometry")[0]

class Asm:
    def __init__(self):
        self.lines = []
    def __call__(self, s, *a):
        for ln in s.strip("\n").split("\n"):
            self.lines.append("    " + ln.strip() if not ln.strip().endswith(":") else ln.strip())
    def label(self, l):
        self.lines.append(l + ":")
    def text(self):
        return "\n".join(self.lines) + "\n"

def kernel_desc(label, vgpr, sgpr=102, accum=None):
    if accum is None:
        accum = (vgpr + 3) // 4 * 4
    return f""".section .rodata,"a"
.p2align 6
.amdhsa_kernel {label}
  .amdhsa_next_free_vgpr {vgpr}
  .amdhsa_next_free_sgpr {sgpr}
  .amdhsa_accum_offset {accum}
  .amdhsa_group_segment_fixed_size 0
  .amdhsa_kernarg_size 104
  .amdhsa_user_sgpr_count 2
  .amdhsa_user_sgpr_kernarg_segment_ptr 1
  .amdhsa_system_sgpr_workgroup_id_x 1
.end_amdhsa_kernel
.text
"""

def kernel_head(label):
    return f""".globl {label}
.p2align 8
.type {label},@function
{label}:
"""

P_X, P_K, P_V, P_WQ, P_WO, P_BX, P_W1, P_B1, P_W2, P_B2, P_OUT, P_DBG, P_WS = [4 + 2 * i for i in range(13)]

def prologue(a):
    a("""
    s_load_dwordx16 s[4:19], s[0:1], 0
    s_load_dwordx8 s[20:27], s[0:1], 64
    s_load_dwordx2 s[28:29], s[0:1], 96
    """)

def srd(a, d, ptr, size):
    a(f"""
    s_mov_b32 s{d}, s{ptr}
    s_and_b32 s{d+1}, s{ptr+1}, 0xffff
    s_mov_b32 s{d+2}, {size}
    s_mov_b32 s{d+3}, 0x20000
    """)

def allreduce16_dpp(a, v, op="v_add_f32"):
    for ctl in ("quad_perm:[1,0,3,2]", "quad_perm:[2,3,0,1]", "row_half_mirror", "row_mirror"):
        a(f"s_nop 1\n{op}_dpp v{v}, v{v}, v{v} {ctl} row_mask:0xf bank_mask:0xf")

def wave_allreduce_sum(a, v, s0):
    allreduce16_dpp(a, v)
    a(f"""
    s_nop 1
    v_readlane_b32 s{s0}, v{v}, 0
    v_readlane_b32 s{s0+1}, v{v}, 16
    v_readlane_b32 s{s0+2}, v{v}, 32
    v_readlane_b32 s{s0+3}, v{v}, 48
    s_nop 1
    v_mov_b32 v{v}, s{s0}
    v_add_f32 v{v}, s{s0+1}, v{v}
    v_add_f32 v{v}, s{s0+2}, v{v}
    v_add_f32 v{v}, s{s0+3}, v{v}
    """)

def bf16r(a, d, s):
    a(f"v_cvt_pk_bf16_f32 v{d}, v{s}, v{s}\nv_lshlrev_b32 v{d}, 16, v{d}")

def xg_reduce(a, v, t, op):
    a(f"""
    v_mov_b32 v{t}, v{v}
    s_nop 1
    v_permlane16_swap_b32 v{v}, v{t}
    s_nop 1
    {op} v{v}, v{v}, v{t}
    v_mov_b32 v{t}, v{v}
    s_nop 1
    v_permlane32_swap_b32 v{v}, v{t}
    s_nop 1
    {op} v{v}, v{v}, v{t}
    """)

WS_Q = 0
WS_H = 0x10000
WS_ACC1 = 0x18000
WS_ACC2 = 0x1C000
WS_ML = 0x20000
WS_O = 0x40000
WS_SIZE = 0x400000
```

```python
import sys
from gen_common import *

XN_STRIDE = 1040

def layernorm(a, vx, srd_unused=None):
    for i in range(4):
        a(f"v_lshlrev_b32 v{40+2*i}, 16, v{vx+i}\nv_and_b32 v{41+2*i}, 0xffff0000, v{vx+i}")
    a("v_add_f32 v48, v40, v41")
    for i in range(2, 8):
        a(f"v_add_f32 v48, v48, v{40+i}")
    wave_allreduce_sum(a, 48, 60)
    a("v_mul_f32 v49, 0x3b000000, v48")
    for i in range(8):
        a(f"v_sub_f32 v{50+i}, v{40+i}, v49")
    a("v_mul_f32 v48, v50, v50")
    for i in range(1, 8):
        a(f"v_fmac_f32 v48, v{50+i}, v{50+i}")
    wave_allreduce_sum(a, 48, 60)
    a("v_mul_f32 v48, 0x3b000000, v48")
    bf16r(a, 49, 49)
    bf16r(a, 48, 48)
    a("v_add_f32 v48, 0x3727c5ac, v48")
    bf16r(a, 48, 48)
    a("v_sqrt_f32 v48, v48\ns_nop 0")
    bf16r(a, 48, 48)
    a("v_rcp_f32 v58, v48\ns_nop 0")
    for i in range(8):
        a(f"v_sub_f32 v{50+i}, v{40+i}, v49")
        bf16r(a, 50+i, 50+i)
        a(f"""
        v_mul_f32 v59, v{50+i}, v58
        v_fma_f32 v{40+i}, -v59, v48, v{50+i}
        v_fma_f32 v{50+i}, v{40+i}, v58, v59
        """)
    for i in range(4):
        a(f"v_cvt_pk_bf16_f32 v{vx+i}, v{50+2*i}, v{51+2*i}")

def silu_like(a, d, x, t, scale_hex):
    a(f"""
    v_mul_f32 v{t}, {scale_hex}, v{x}
    v_exp_f32 v{t}, v{t}
    s_nop 0
    v_add_f32 v{t}, 1.0, v{t}
    v_rcp_f32 v{t}, v{t}
    s_nop 0
    v_mul_f32 v{d}, v{x}, v{t}
    """)

def gelu(a, x, t1, t2):
    import struct, math
    c1 = math.sqrt(2.0 / math.pi); c2 = c1 * 0.044715; l2e = math.log2(math.e)
    h = lambda f: hex(struct.unpack("<I", struct.pack("<f", f))[0])
    a(f"""
    v_mul_f32 v{t1}, v{x}, v{x}
    v_mul_f32 v{t1}, {h(-2*l2e*c2)}, v{t1}
    v_add_f32 v{t1}, {h(-2*l2e*c1)}, v{t1}
    v_mul_f32 v{t1}, v{t1}, v{x}
    v_exp_f32 v{t1}, v{t1}
    s_nop 0
    v_add_f32 v{t1}, 1.0, v{t1}
    v_rcp_f32 v{t1}, v{t1}
    s_nop 0
    v_mul_f32 v{x}, v{x}, v{t1}
    """)

def k1():
    a = Asm()
    L = NAME + "_kernel"
    a("s_cmp_ge_u32 s2, 184\ns_cbranch_scc1 L_k1_end")
    prologue(a)
    a("""
    v_and_b32 v1, 63, v0
    v_lshrrev_b32 v6, 6, v0
    v_and_b32 v2, 15, v1
    v_readfirstlane_b32 s30, v6
    v_lshrrev_b32 v3, 4, v1
    s_mov_b32 s52, 8192
    s_mov_b32 s53, 3584
    s_sub_u32 s54, s2, 128
    s_waitcnt lgkmcnt(0)
    s_cmp_lt_u32 s2, 128
    s_cselect_b32 s32, s10, s16
    s_cselect_b32 s33, s11, s17
    s_cselect_b32 s31, s52, s53
    s_cselect_b32 s54, s2, s54
    s_and_b32 s33, s33, 0xffff
    s_lshl_b32 s34, s31, 9
    s_mov_b32 s35, 0x20000
    """)
    srd(a, 36, P_X, 8192)
    srd(a, 40, P_WS, WS_SIZE)
    srd(a, 44, P_B1, 3584)
    a("""
    v_lshlrev_b32 v5, 4, v1
    s_lshl_b32 s55, s30, 10
    v_add_u32 v5, s55, v5
    buffer_load_dwordx4 v[32:35], v5, s[36:39], 0 offen
    v_mul_lo_u32 v4, v3, s31
    v_lshlrev_b32 v4, 3, v4
    v_lshl_add_u32 v4, v2, 2, v4
    s_mul_i32 s55, s30, s31
    s_lshl_b32 s55, s55, 6
    s_lshl_b32 s56, s54, 6
    s_add_u32 s55, s55, s56
    v_add_u32 v4, s55, v4
    s_mov_b32 s56, 0
    s_mul_i32 s57, s31, 24
    """)
    for ks in range(2):
        for j in range(8):
            a(f"buffer_load_dword v{16+ks*8+j}, v4, s[32:35], s56 offen\ns_add_u32 s56, s56, s31")
        if ks == 0:
            a("s_add_u32 s56, s56, s57")
    a(f"""
    s_cmp_ge_u32 s2, 4
    s_cbranch_scc1 L_k1_nozero
    v_mov_b32 v8, 0
    v_mov_b32 v9, 0
    v_mov_b32 v10, 0
    v_mov_b32 v11, 0
    s_lshl_b32 s55, s2, 13
    s_add_u32 s55, s55, {WS_ACC1}
    v_lshlrev_b32 v7, 4, v0
    buffer_store_dwordx4 v[8:11], v7, s[40:43], s55 offen
    L_k1_nozero:
    s_waitcnt vmcnt(16)
    """)
    layernorm(a, 32)
    a(f"""
    v_lshlrev_b32 v7, 4, v1
    s_mul_i32 s55, s30, {XN_STRIDE}
    v_add_u32 v7, s55, v7
    ds_write_b128 v7, v[32:35]
    v_and_b32 v58, 7, v2
    v_mul_u32_u24 v58, {XN_STRIDE}, v58
    v_lshl_add_u32 v58, v3, 4, v58
    s_lshl_b32 s55, s30, 7
    v_add_u32 v58, s55, v58
    s_waitcnt lgkmcnt(0)
    s_barrier
    ds_read_b128 v[60:63], v58
    ds_read_b128 v[64:67], v58 offset:64
    s_mov_b32 s58, 0x05040100
    s_mov_b32 s59, 0x07060302
    s_waitcnt vmcnt(0)
    """)
    for ks in range(2):
        for jj in range(4):
            a(f"v_perm_b32 v{70+ks*8+jj}, v{16+ks*8+2*jj+1}, v{16+ks*8+2*jj}, s58")
            a(f"v_perm_b32 v{74+ks*8+jj}, v{16+ks*8+2*jj+1}, v{16+ks*8+2*jj}, s59")
    for i in range(8):
        a(f"v_mov_b32 v{88+i}, 0")
    RED = 8448
    a(f"""
    s_waitcnt lgkmcnt(0)
    v_mfma_f32_16x16x32_bf16 v[88:91], v[60:63], v[70:73], v[88:91]
    v_mfma_f32_16x16x32_bf16 v[92:95], v[60:63], v[74:77], v[92:95]
    v_mfma_f32_16x16x32_bf16 v[88:91], v[64:67], v[78:81], v[88:91]
    v_mfma_f32_16x16x32_bf16 v[92:95], v[64:67], v[82:85], v[92:95]
    v_and_b32 v7, 1, v3
    v_lshlrev_b32 v7, 9, v7
    v_lshl_add_u32 v7, v2, 3, v7
    s_lshl_b32 s55, s30, 10
    s_add_u32 s55, s55, {RED}
    v_add_u32 v7, s55, v7
    s_nop 7
    """)
    for r in range(4):
        a(f"ds_write2_b32 v7, v{88+r}, v{92+r} offset0:{r*32} offset1:{r*32+1}")
    a(f"""
    s_waitcnt lgkmcnt(0)
    s_barrier
    s_cmp_ge_u32 s30, 2
    s_cbranch_scc1 L_k1_end
    v_lshlrev_b32 v7, 3, v0
    """)
    for w in range(8):
        a(f"ds_read_b64 v[{16+2*w}:{17+2*w}], v7 offset:{RED + w*1024}")
    a("s_waitcnt lgkmcnt(0)")
    for w in range(1, 8):
        a(f"v_add_f32 v16, v16, v{16+2*w}\nv_add_f32 v17, v17, v{17+2*w}")
    a(f"""
    v_lshrrev_b32 v8, 4, v0
    v_and_b32 v9, 15, v0
    s_cmp_ge_u32 s2, 128
    s_cbranch_scc1 L_k1_h
    v_cvt_pk_bf16_f32 v18, v16, v17
    v_lshlrev_b32 v8, 13, v8
    v_lshl_add_u32 v8, v9, 2, v8
    s_lshl_b32 s55, s54, 6
    buffer_store_dword v18, v8, s[40:43], s55 offen
    s_branch L_k1_end
    L_k1_h:
    s_lshl_b32 s55, s54, 6
    v_lshlrev_b32 v10, 2, v9
    buffer_load_dword v18, v10, s[44:47], s55 offen
    v_cvt_pk_bf16_f32 v19, v16, v17
    v_lshlrev_b32 v16, 16, v19
    v_and_b32 v17, 0xffff0000, v19
    s_waitcnt vmcnt(0)
    v_lshlrev_b32 v20, 16, v18
    v_and_b32 v21, 0xffff0000, v18
    v_add_f32 v16, v16, v20
    v_add_f32 v17, v17, v21
    v_cvt_pk_bf16_f32 v19, v16, v17
    v_lshlrev_b32 v16, 16, v19
    v_and_b32 v17, 0xffff0000, v19
    """)
    gelu(a, 16, 20, 21)
    gelu(a, 17, 20, 21)
    a(f"""
    v_cvt_pk_bf16_f32 v18, v16, v17
    v_mul_u32_u24 v8, 3584, v8
    v_lshl_add_u32 v8, v9, 2, v8
    s_add_u32 s55, s55, {WS_H}
    buffer_store_dword v18, v8, s[40:43], s55 offen
    L_k1_end:
    s_endpgm
    """)
    return kernel_head(L) + a.text() + kernel_desc(L, 96)

def gemv64_tail(a, RED, acc_off, tag):
    a(f"""
    v_and_b32 v7, 1, v3
    v_lshlrev_b32 v7, 10, v7
    v_lshl_add_u32 v7, v2, 3, v7
    s_and_b32 s55, s30, 3
    s_lshl_b32 s55, s55, 11
    s_lshr_b32 s56, s30, 2
    s_lshl_b32 s56, s56, 7
    s_add_u32 s55, s55, s56
    s_add_u32 s55, s55, {RED}
    v_add_u32 v7, s55, v7
    s_nop 7
    """)
    for r in range(4):
        a(f"ds_write2_b32 v7, v{88+r}, v{92+r} offset0:{r*64} offset1:{r*64+1}")
    a(f"""
    s_waitcnt lgkmcnt(0)
    s_barrier
    v_lshlrev_b32 v7, 2, v0
    ds_read_b32 v16, v7 offset:{RED}
    ds_read_b32 v17, v7 offset:{RED+2048}
    ds_read_b32 v18, v7 offset:{RED+4096}
    ds_read_b32 v19, v7 offset:{RED+6144}
    v_lshrrev_b32 v8, 6, v0
    v_and_b32 v9, 63, v0
    v_lshlrev_b32 v8, 11, v8
    v_lshl_add_u32 v8, v9, 2, v8
    s_lshl_b32 s55, s54, 8
    s_add_u32 s55, s55, {acc_off}
    s_waitcnt lgkmcnt(0)
    v_add_f32 v16, v16, v17
    v_add_f32 v18, v18, v19
    v_add_f32 v16, v16, v18
    buffer_atomic_add_f32 v16, v8, s[40:43], s55 offen
    """)

def gemv64_wload(a, wsrd, row0_s):
    a(f"""
    s_and_b32 s55, s30, 3
    s_lshl_b32 s55, s55, 5
    s_add_u32 s55, s55, s{row0_s}
    s_lshl_b32 s55, s55, 10
    s_lshl_b32 s56, s54, 7
    s_add_u32 s55, s55, s56
    s_lshr_b32 s56, s30, 2
    s_lshl_b32 s56, s56, 6
    s_add_u32 s55, s55, s56
    v_lshlrev_b32 v4, 13, v3
    v_lshl_add_u32 v4, v2, 2, v4
    """)
    for j in range(4):
        a(f"buffer_load_dword v{16+j}, v4, s[{wsrd}:{wsrd+3}], s55 offen offset:{j*1024}")
    a("s_add_u32 s55, s55, 4096")
    for j in range(4):
        a(f"buffer_load_dword v{20+j}, v4, s[{wsrd}:{wsrd+3}], s55 offen offset:{j*1024}")

def gemv64_mfma(a, va):
    a("s_mov_b32 s58, 0x05040100\ns_mov_b32 s59, 0x07060302")
    for jj in range(4):
        a(f"v_perm_b32 v{70+jj}, v{16+2*jj+1}, v{16+2*jj}, s58")
        a(f"v_perm_b32 v{74+jj}, v{16+2*jj+1}, v{16+2*jj}, s59")
    for i in range(8):
        a(f"v_mov_b32 v{88+i}, 0")
    a(f"""
    s_nop 1
    v_mfma_f32_16x16x32_bf16 v[88:91], v[{va}:{va+3}], v[70:73], v[88:91]
    v_mfma_f32_16x16x32_bf16 v[92:95], v[{va}:{va+3}], v[74:77], v[92:95]
    """)

def k2():
    a = Asm()
    L = "attn_kernel"
    a("s_cmp_ge_u32 s2, 368\ns_cbranch_scc1 L_k2_end")
    prologue(a)
    a("""
    v_and_b32 v1, 63, v0
    v_lshrrev_b32 v6, 6, v0
    v_and_b32 v2, 15, v1
    v_readfirstlane_b32 s30, v6
    v_lshrrev_b32 v3, 4, v1
    s_waitcnt lgkmcnt(0)
    """)
    srd(a, 40, P_WS, WS_SIZE)
    a("s_cmp_ge_u32 s2, 256\ns_cbranch_scc1 L_k2_w2")
    srd(a, 32, P_K, 0x4000000)
    srd(a, 36, P_V, 0x4000000)
    a("""
    s_lshr_b32 s50, s2, 2
    s_and_b32 s51, s2, 3
    s_lshl_b32 s52, s50, 20
    s_lshl_b32 s53, s51, 16
    s_add_u32 s52, s52, s53
    s_lshl_b32 s53, s30, 13
    s_add_u32 s52, s52, s53
    s_add_u32 s52, s52, 0xC0000
    s_add_u32 s53, s52, 4096
    v_lshlrev_b32 v4, 8, v2
    v_lshl_add_u32 v4, v3, 4, v4
    """)
    for t in range(2):
        for ks in range(4):
            a(f"buffer_load_dwordx4 v[{16+t*16+ks*4}:{19+t*16+ks*4}], v4, s[32:35], s{52+t} offen offset:{ks*64}")
    a("""
    v_and_b32 v5, 3, v2
    v_lshlrev_b32 v5, 8, v5
    v_lshl_add_u32 v5, v3, 4, v5
    s_lshl_b32 s54, s50, 10
    """)
    for ks in range(4):
        a(f"buffer_load_dwordx4 v[{48+ks*4}:{51+ks*4}], v5, s[40:43], s54 offen offset:{ks*64}")
    a("""
    v_lshlrev_b32 v6, 10, v3
    v_lshl_add_u32 v6, v2, 4, v6
    """)
    for j in range(8):
        a(f"buffer_load_dwordx4 v[{64+j*4}:{67+j*4}], v6, s[36:39], s{52+(j>>2)} offen offset:{(j&3)*256}")
    for i in range(8):
        a(f"v_mov_b32 v{96+i}, 0")
    a("s_waitcnt vmcnt(8)")
    for t in range(2):
        for ks in range(4):
            a(f"v_mfma_f32_16x16x32_bf16 v[{96+t*4}:{99+t*4}], v[{16+t*16+ks*4}:{19+t*16+ks*4}], v[{48+ks*4}:{51+ks*4}], v[{96+t*4}:{99+t*4}]")
    a("s_nop 7\ns_nop 1\ns_mov_b32 s55, 0x3db504f3")
    for i in range(4):
        a(f"""
        v_cvt_pk_bf16_f32 v{16+i}, v{96+2*i}, v{97+2*i}
        v_lshlrev_b32 v{96+2*i}, 16, v{16+i}
        v_and_b32 v{97+2*i}, 0xffff0000, v{16+i}
        v_mul_f32 v{96+2*i}, s55, v{96+2*i}
        v_mul_f32 v{97+2*i}, s55, v{97+2*i}
        v_cvt_pk_bf16_f32 v{16+i}, v{96+2*i}, v{97+2*i}
        v_lshlrev_b32 v{96+2*i}, 16, v{16+i}
        v_and_b32 v{97+2*i}, 0xffff0000, v{16+i}
        """)
    a("""
    v_max3_f32 v20, v96, v97, v98
    v_max3_f32 v20, v20, v99, v100
    v_max3_f32 v20, v20, v101, v102
    v_max_f32 v20, v20, v103
    """)
    xg_reduce(a, 20, 21, "v_max_f32")
    a("""
    v_and_b32 v22, 3, v2
    v_lshlrev_b32 v22, 5, v22
    s_lshl_b32 s55, s30, 2
    v_add_u32 v23, s55, v22
    ds_write_b32 v23, v20
    s_waitcnt lgkmcnt(0)
    s_barrier
    ds_read_b128 v[24:27], v22
    ds_read_b128 v[28:31], v22 offset:16
    s_waitcnt lgkmcnt(0)
    v_max3_f32 v20, v24, v25, v26
    v_max3_f32 v20, v20, v27, v28
    v_max3_f32 v20, v20, v29, v30
    v_max_f32 v20, v20, v31
    s_mov_b32 s55, 0x3fb8aa3b
    """)
    for i in range(8):
        a(f"v_sub_f32 v{96+i}, v{96+i}, v20\nv_mul_f32 v{96+i}, s55, v{96+i}\nv_exp_f32 v{96+i}, v{96+i}")
    a("s_nop 0\nv_add_f32 v21, v96, v97")
    for i in range(2, 8):
        a(f"v_add_f32 v21, v21, v{96+i}")
    for i in range(4):
        a(f"v_cvt_pk_bf16_f32 v{24+i}, v{96+2*i}, v{97+2*i}")
    xg_reduce(a, 21, 28, "v_add_f32")
    a("ds_write_b32 v23, v21 offset:128")
    a("s_mov_b32 s58, 0x05040100\ns_mov_b32 s59, 0x07060302\ns_waitcnt vmcnt(0)")
    for e in range(8):
        for jj in range(4):
            a(f"v_perm_b32 v{104+e*4+jj}, v{64+(2*jj+1)*4+(e>>1)}, v{64+(2*jj)*4+(e>>1)}, s{58+(e&1)}")
    for i in range(32):
        a(f"v_mov_b32 v{32+i}, 0")
    a("s_nop 1")
    for e in range(8):
        a(f"v_mfma_f32_16x16x32_bf16 v[{32+e*4}:{35+e*4}], v[24:27], v[{104+e*4}:{107+e*4}], v[{32+e*4}:{35+e*4}]")
    a("""
    s_nop 7
    s_nop 1
    """)
    for r in range(4):
        for e in range(8):
            a(f"v_mov_b32 v{64+r*8+e}, v{32+e*4+r}")
    a("""
    v_lshlrev_b32 v22, 5, v2
    s_lshl_b32 s55, s30, 11
    v_add_u32 v22, s55, v22
    v_cmp_gt_u32 vcc, 16, v1
    s_and_saveexec_b64 s[56:57], vcc
    """)
    for r in range(4):
        a(f"ds_write_b128 v22, v[{64+r*8}:{67+r*8}] offset:{256+r*512}\nds_write_b128 v22, v[{68+r*8}:{71+r*8}] offset:{256+r*512+16}")
    a("""
    s_mov_b64 exec, s[56:57]
    s_waitcnt lgkmcnt(0)
    s_barrier
    v_lshlrev_b32 v30, 2, v0
    """)
    for w in range(8):
        a(f"ds_read_b32 v{16+w}, v30 offset:{256+w*2048}")
    a("s_waitcnt lgkmcnt(0)")
    for w in range(1, 8):
        a(f"v_add_f32 v16, v16, v{16+w}")
    a(f"""
    s_lshl_b32 s55, s2, 11
    s_add_u32 s55, s55, {WS_O}
    buffer_store_dword v16, v30, s[40:43], s55 offen
    v_cmp_gt_u32 vcc, 4, v0
    s_and_saveexec_b64 s[56:57], vcc
    s_cbranch_execz L_k2_end
    v_lshlrev_b32 v22, 5, v0
    ds_read_b128 v[24:27], v22
    ds_read_b128 v[28:31], v22 offset:16
    ds_read_b128 v[32:35], v22 offset:128
    ds_read_b128 v[36:39], v22 offset:144
    s_waitcnt lgkmcnt(0)
    v_max3_f32 v20, v24, v25, v26
    v_max3_f32 v20, v20, v27, v28
    v_max3_f32 v20, v20, v29, v30
    v_max_f32 v20, v20, v31
    v_add_f32 v21, v32, v33
    v_add_f32 v21, v21, v34
    v_add_f32 v21, v21, v35
    v_add_f32 v21, v21, v36
    v_add_f32 v21, v21, v37
    v_add_f32 v21, v21, v38
    v_add_f32 v21, v21, v39
    v_lshlrev_b32 v22, 3, v0
    s_lshl_b32 s55, s2, 5
    s_add_u32 s55, s55, {WS_ML}
    buffer_store_dwordx2 v[20:21], v22, s[40:43], s55 offen
    s_endpgm
    L_k2_w2:
    """)
    srd(a, 32, P_W2, 1792*1024)
    a("""
    s_sub_u32 s50, s2, 256
    s_and_b32 s54, s50, 7
    s_lshr_b32 s50, s50, 3
    s_lshl_b32 s51, s50, 7
    """)
    gemv64_wload(a, 32, 51)
    a(f"""
    v_and_b32 v5, 7, v2
    v_mul_u32_u24 v5, 3584, v5
    v_lshl_add_u32 v5, v3, 4, v5
    s_and_b32 s55, s30, 3
    s_lshl_b32 s55, s55, 6
    s_lshl_b32 s56, s50, 8
    s_add_u32 s55, s55, s56
    s_add_u32 s55, s55, {WS_H}
    buffer_load_dwordx4 v[60:63], v5, s[40:43], s55 offen
    s_waitcnt vmcnt(0)
    """)
    gemv64_mfma(a, 60)
    gemv64_tail(a, 0, WS_ACC2, "k2")
    a("""
    L_k2_end:
    s_endpgm
    """)
    return kernel_head(L) + a.text() + kernel_desc(L, 136)

def k3():
    a = Asm()
    L = "oproj_kernel"
    a("s_cmp_ge_u32 s2, 256\ns_cbranch_scc1 L_k3_end")
    prologue(a)
    a("""
    v_and_b32 v1, 63, v0
    v_lshrrev_b32 v6, 6, v0
    v_and_b32 v2, 15, v1
    v_readfirstlane_b32 s30, v6
    v_lshrrev_b32 v3, 4, v1
    s_waitcnt lgkmcnt(0)
    """)
    srd(a, 40, P_WS, WS_SIZE)
    srd(a, 32, P_WO, 4096*1024)
    a("""
    s_and_b32 s54, s2, 7
    s_lshr_b32 s50, s2, 3
    s_lshl_b32 s51, s50, 7
    """)
    gemv64_wload(a, 32, 51)
    a(f"""
    s_lshl_b32 s55, s30, 5
    s_lshr_b32 s56, s50, 2
    s_lshl_b32 s56, s56, 2
    s_add_u32 s55, s55, s56
    s_and_b32 s57, s50, 3
    s_lshl_b32 s60, s55, 11
    s_lshl_b32 s61, s57, 9
    s_add_u32 s60, s60, s61
    s_add_u32 s60, s60, {WS_O}
    s_lshl_b32 s61, s55, 5
    s_lshl_b32 s62, s57, 3
    s_add_u32 s61, s61, s62
    s_add_u32 s61, s61, {WS_ML}
    v_lshlrev_b32 v5, 3, v1
    v_mov_b32 v6, 0
    """)
    for c in range(4):
        a(f"buffer_load_dwordx2 v[{32+2*c}:{33+2*c}], v5, s[40:43], s60 offen\ns_add_u32 s60, s60, 2048")
    for c in range(4):
        a(f"buffer_load_dwordx2 v[{40+2*c}:{41+2*c}], v6, s[40:43], s61 offen offset:{c*32}")
    a("""
    s_waitcnt vmcnt(0)
    v_max3_f32 v48, v40, v42, v44
    v_max_f32 v48, v48, v46
    s_mov_b32 s55, 0x3fb8aa3b
    """)
    for c in range(4):
        a(f"v_sub_f32 v{50+c}, v{40+2*c}, v48\nv_mul_f32 v{50+c}, s55, v{50+c}\nv_exp_f32 v{50+c}, v{50+c}")
    a("""
    s_nop 0
    v_mul_f32 v49, v50, v41
    v_fmac_f32 v49, v51, v43
    v_fmac_f32 v49, v52, v45
    v_fmac_f32 v49, v53, v47
    v_mul_f32 v54, v50, v32
    v_mul_f32 v55, v50, v33
    v_fmac_f32 v54, v51, v34
    v_fmac_f32 v55, v51, v35
    v_fmac_f32 v54, v52, v36
    v_fmac_f32 v55, v52, v37
    v_fmac_f32 v54, v53, v38
    v_fmac_f32 v55, v53, v39
    v_rcp_f32 v49, v49
    s_nop 0
    v_mul_f32 v54, v54, v49
    v_mul_f32 v55, v55, v49
    v_cvt_pk_bf16_f32 v54, v54, v55
    s_mul_i32 s55, s30, 272
    v_lshlrev_b32 v5, 2, v1
    v_add_u32 v5, s55, v5
    ds_write_b32 v5, v54
    v_and_b32 v5, 7, v2
    v_mul_u32_u24 v5, 272, v5
    v_lshl_add_u32 v5, v3, 4, v5
    s_and_b32 s55, s30, 3
    s_lshl_b32 s55, s55, 6
    v_add_u32 v5, s55, v5
    s_waitcnt lgkmcnt(0)
    s_barrier
    ds_read_b128 v[60:63], v5
    s_waitcnt lgkmcnt(0)
    """)
    gemv64_mfma(a, 60)
    gemv64_tail(a, 4096, WS_ACC1, "k3")
    srd(a, 44, P_DBG, 256)
    a(f"""
    s_waitcnt vmcnt(0)
    s_barrier
    v_mov_b32 v16, 1
    v_mov_b32 v17, 0
    v_cmp_eq_u32 vcc, 0, v0
    s_and_saveexec_b64 s[56:57], vcc
    s_cbranch_execz L_k3_noat
    buffer_atomic_add v16, v17, s[44:47], 0 offen sc0
    s_waitcnt vmcnt(0)
    ds_write_b32 v17, v16 offset:16000
    s_waitcnt lgkmcnt(0)
    L_k3_noat:
    s_mov_b64 exec, s[56:57]
    s_barrier
    v_mov_b32 v17, 0
    ds_read_b32 v16, v17 offset:16000
    s_waitcnt lgkmcnt(0)
    v_readfirstlane_b32 s55, v16
    s_cmp_lg_u32 s55, 255
    s_cbranch_scc1 L_k3_end
    """)
    srd(a, 32, P_X, 8192)
    srd(a, 36, P_B2, 1024)
    srd(a, 48, P_OUT, 8192)
    a(f"""
    v_lshlrev_b32 v5, 5, v0
    v_lshlrev_b32 v6, 4, v0
    v_lshlrev_b32 v7, 4, v1
    buffer_load_dwordx4 v[16:19], v5, s[40:43], 0 offen offset:0 sc1
    """.replace("s[40:43], 0 offen offset:0", f"s[40:43], s55 offen"))
    a.lines.pop()
    a(f"""
    s_mov_b32 s55, {WS_ACC1}
    s_mov_b32 s56, {WS_ACC2}
    buffer_load_dwordx4 v[16:19], v5, s[40:43], s55 offen sc1
    buffer_load_dwordx4 v[20:23], v5, s[40:43], s55 offen offset:16 sc1
    buffer_load_dwordx4 v[24:27], v5, s[40:43], s56 offen sc1
    buffer_load_dwordx4 v[28:31], v5, s[40:43], s56 offen offset:16 sc1
    buffer_load_dwordx4 v[32:35], v6, s[32:35], 0 offen
    buffer_load_dwordx4 v[36:39], v7, s[36:39], 0 offen
    s_waitcnt vmcnt(0)
    """)
    for i in range(4):
        a(f"""
        v_cvt_pk_bf16_f32 v40, v{16+2*i}, v{17+2*i}
        v_lshlrev_b32 v41, 16, v40
        v_and_b32 v42, 0xffff0000, v40
        v_cvt_pk_bf16_f32 v40, v{24+2*i}, v{25+2*i}
        v_lshlrev_b32 v43, 16, v40
        v_and_b32 v44, 0xffff0000, v40
        v_lshlrev_b32 v45, 16, v{36+i}
        v_and_b32 v46, 0xffff0000, v{36+i}
        v_add_f32 v43, v43, v45
        v_add_f32 v44, v44, v46
        v_cvt_pk_bf16_f32 v40, v43, v44
        v_lshlrev_b32 v43, 16, v40
        v_and_b32 v44, 0xffff0000, v40
        """)
        silu_like(a, 43, 43, 45, "0xbfb8aa3b")
        silu_like(a, 44, 44, 45, "0xbfb8aa3b")
        a(f"""
        v_cvt_pk_bf16_f32 v40, v43, v44
        v_lshlrev_b32 v43, 16, v40
        v_and_b32 v44, 0xffff0000, v40
        v_mul_f32 v41, v41, v43
        v_mul_f32 v42, v42, v44
        v_cvt_pk_bf16_f32 v40, v41, v42
        v_lshlrev_b32 v41, 16, v40
        v_and_b32 v42, 0xffff0000, v40
        v_lshlrev_b32 v45, 16, v{32+i}
        v_and_b32 v46, 0xffff0000, v{32+i}
        v_add_f32 v41, v41, v45
        v_add_f32 v42, v42, v46
        v_cvt_pk_bf16_f32 v{48+i}, v41, v42
        """)
    a("""
    buffer_store_dwordx4 v[48:51], v6, s[48:51], 0 offen
    L_k3_end:
    s_endpgm
    """)
    return kernel_head(L) + a.text() + kernel_desc(L, 96)

def main():
    out = HEADER
    out += f"; @launch kernel={NAME}_kernel grid=(184,1,1) block=(512,1,1) lds=17408\n"
    out += "; @launch kernel=attn_kernel grid=(368,1,1) block=(512,1,1) lds=17408\n"
    out += "; @launch kernel=oproj_kernel grid=(256,1,1) block=(512,1,1) lds=16384\n"
    out += '.amdgcn_target "amdgcn-amd-amdhsa--gfx950"\n.text\n'
    out += k1() + k2() + k3()
    open(sys.argv[1], "w").write(out)
if __name__ == "__main__":
    main()
```

```python
import sys, os
from gen_common import *
from gen_base import layernorm, silu_like, gelu, XN_STRIDE

L_XN = 0
L_RED = 8448
L_Q = 16640
L_SM = 17664
L_ORED = 0
L_OA = 17920
L_RED2 = 20480
LDS_BYTES = 28672
SC = os.environ.get("SCF", "sc0 sc1")
NT = "sc1 nt"
SPIN = 2000000
WIN = int(os.environ.get("WIN", "3"))
NA = int(os.environ.get("NA", "4"))
SLEEP = int(os.environ.get("SLEEP", "1"))
STAMP = int(os.environ.get("STAMP", "0"))
WS_P1 = 0xC0000
WS_P2 = 0x140000
WS_STAMP = 0x200000
WS_CNT = 0x30000

def stamp(a, i):
    if not STAMP: return
    a(f"s_memrealtime s[80:81]\ns_waitcnt lgkmcnt(0)\ns_mov_b32 s{84+i}, s80")
def stamp_flush(a, role, n=12):
    if not STAMP: return
    a("v_mov_b32 v12, 0")
    for i in range(n):
        a(f"v_writelane_b32 v12, s{84+i}, {i}")
    a(f"""
    v_lshlrev_b32 v13, 2, v1
    s_lshl_b32 s55, s2, 7
    s_add_u32 s55, s55, {WS_STAMP + role*64}
    s_mov_b64 s[56:57], exec
    s_mov_b64 exec, 0xffff
    buffer_store_dword v12, v13, s[40:43], s55 offen
    s_mov_b64 exec, s[56:57]
    """)

def poll_data(a, tag, loads, regs, tmp=12):
    a(f"s_mov_b32 s63, {SPIN}\nL_pd_{tag}:")
    for l in loads: a(l)
    a("s_waitcnt vmcnt(0)")
    rs = list(regs)
    first = True
    a(f"v_max_u32 v{tmp}, v{rs[0]}, v{rs[1]}" if len(rs) > 1 else f"v_mov_b32 v{tmp}, v{rs[0]}")
    i = 2
    while i < len(rs):
        if i + 1 < len(rs):
            a(f"v_max3_u32 v{tmp}, v{tmp}, v{rs[i]}, v{rs[i+1]}"); i += 2
        else:
            a(f"v_max_u32 v{tmp}, v{tmp}, v{rs[i]}"); i += 1
    a(f"""
    v_cmp_eq_u32 vcc, -1, v{tmp}
    s_cmp_eq_u64 vcc, 0
    s_cbranch_scc1 L_pdd_{tag}
    s_sleep {SLEEP}
    s_sub_u32 s63, s63, 1
    s_cmp_lg_u32 s63, 0
    s_cbranch_scc1 L_pd_{tag}
    L_pdd_{tag}:
    """)

def gemv_w_issue(a, vbase, srdn, row0_sgpr):
    a(f"""
    s_and_b32 s55, s30, 3
    s_lshl_b32 s55, s55, 5
    s_add_u32 s55, s55, s{row0_sgpr}
    s_lshl_b32 s55, s55, 10
    s_and_b32 s56, s2, 7
    s_lshl_b32 s56, s56, 7
    s_add_u32 s55, s55, s56
    s_lshr_b32 s56, s30, 2
    s_lshl_b32 s56, s56, 6
    s_add_u32 s55, s55, s56
    v_lshlrev_b32 v7, 13, v3
    v_lshl_add_u32 v7, v2, 2, v7
    """)
    for j in range(4):
        a(f"buffer_load_dword v{vbase+j}, v7, s[{srdn}:{srdn+3}], s55 offen offset:{j*1024} {NT}")
    a("s_add_u32 s55, s55, 4096")
    for j in range(4):
        a(f"buffer_load_dword v{vbase+4+j}, v7, s[{srdn}:{srdn+3}], s55 offen offset:{j*1024} {NT}")

def gemv_compute(a, vw, va, out_soff_code, wait_a):
    for jj in range(4):
        a(f"v_perm_b32 v{70+jj}, v{vw+2*jj+1}, v{vw+2*jj}, s58")
        a(f"v_perm_b32 v{74+jj}, v{vw+2*jj+1}, v{vw+2*jj}, s59")
    for i in range(8):
        a(f"v_mov_b32 v{88+i}, 0")
    a(f"""
    {wait_a}
    v_mfma_f32_16x16x32_bf16 v[88:91], v[{va}:{va+3}], v[70:73], v[88:91]
    v_mfma_f32_16x16x32_bf16 v[92:95], v[{va}:{va+3}], v[74:77], v[92:95]
    v_and_b32 v7, 1, v3
    v_lshlrev_b32 v7, 10, v7
    v_lshl_add_u32 v7, v2, 3, v7
    s_and_b32 s55, s30, 3
    s_lshl_b32 s55, s55, 11
    s_lshr_b32 s56, s30, 2
    s_lshl_b32 s56, s56, 7
    s_add_u32 s55, s55, s56
    s_add_u32 s55, s55, {L_RED2}
    v_add_u32 v7, s55, v7
    s_nop 7
    """)
    for r in range(4):
        a(f"ds_write2_b32 v7, v{88+r}, v{92+r} offset0:{r*64} offset1:{r*64+1}")
    a(f"""
    s_waitcnt lgkmcnt(0)
    s_barrier
    v_lshlrev_b32 v7, 2, v0
    ds_read_b32 v64, v7 offset:{L_RED2}
    ds_read_b32 v65, v7 offset:{L_RED2+2048}
    ds_read_b32 v66, v7 offset:{L_RED2+4096}
    ds_read_b32 v67, v7 offset:{L_RED2+6144}
    v_lshlrev_b32 v68, 2, v1
    {out_soff_code}
    s_waitcnt lgkmcnt(0)
    v_add_f32 v64, v64, v65
    v_add_f32 v66, v66, v67
    v_add_f32 v64, v64, v66
    buffer_store_dword v64, v68, s[40:43], s55 offen {SC}
    """)

def gen():
    a = Asm()
    L = NAME + "_kernel"
    KB, VB, W2B, WOB = 104, 136, 16, 96
    a("s_cmp_ge_u32 s2, 256\ns_cbranch_scc1 L_end")
    prologue(a)
    a("""
    v_and_b32 v1, 63, v0
    v_lshrrev_b32 v6, 6, v0
    v_and_b32 v2, 15, v1
    v_readfirstlane_b32 s30, v6
    v_lshrrev_b32 v3, 4, v1
    s_mov_b32 s58, 0x05040100
    s_mov_b32 s59, 0x07060302
    s_waitcnt lgkmcnt(0)
    """)
    srd(a, 40, P_WS, WS_SIZE)
    srd(a, 44, P_DBG, 256)
    stamp(a, 0)
    a("s_cmp_eq_u32 s30, 8\ns_cbranch_scc1 L_service")
    a("s_cmp_ge_u32 s2, 184\ns_cbranch_scc1 L_m_nop1load")
    a("""
    s_mov_b32 s52, 8192
    s_mov_b32 s53, 3584
    s_sub_u32 s54, s2, 128
    s_cmp_lt_u32 s2, 128
    s_cselect_b32 s32, s10, s16
    s_cselect_b32 s33, s11, s17
    s_cselect_b32 s31, s52, s53
    s_cselect_b32 s54, s2, s54
    s_and_b32 s33, s33, 0xffff
    s_lshl_b32 s34, s31, 9
    s_mov_b32 s35, 0x20000
    """)
    srd(a, 36, P_X, 8192)
    a("""
    v_lshlrev_b32 v5, 4, v1
    s_lshl_b32 s55, s30, 10
    v_add_u32 v5, s55, v5
    buffer_load_dwordx4 v[32:35], v5, s[36:39], 0 offen
    v_mul_lo_u32 v4, v3, s31
    v_lshlrev_b32 v4, 3, v4
    v_lshl_add_u32 v4, v2, 2, v4
    s_mul_i32 s55, s30, s31
    s_lshl_b32 s55, s55, 6
    s_lshl_b32 s56, s54, 6
    s_add_u32 s55, s55, s56
    v_add_u32 v4, s55, v4
    s_mov_b32 s56, 0
    s_mul_i32 s57, s31, 24
    """)
    for ks in range(2):
        for j in range(8):
            a(f"buffer_load_dword v{16+ks*8+j}, v4, s[32:35], s56 offen {NT}\ns_add_u32 s56, s56, s31")
        if ks == 0:
            a("s_add_u32 s56, s56, s57")
    a("L_m_nop1load:")
    srd(a, 76, P_K, 0x4000000)
    srd(a, 64, P_V, 0x4000000)
    srd(a, 68, P_WO, 4096*1024)
    srd(a, 72, P_W2, 1792*1024)
    a("""
    s_lshr_b32 s50, s2, 2
    s_and_b32 s51, s2, 3
    s_lshl_b32 s52, s50, 20
    s_lshl_b32 s53, s51, 16
    s_add_u32 s52, s52, s53
    s_lshl_b32 s53, s30, 13
    s_add_u32 s52, s52, s53
    s_add_u32 s52, s52, 0xC0000
    s_add_u32 s53, s52, 4096
    v_lshlrev_b32 v4, 8, v2
    v_lshl_add_u32 v4, v3, 4, v4
    v_lshlrev_b32 v6, 10, v3
    v_lshl_add_u32 v6, v2, 4, v6
    """)
    stream = []
    for t in range(2):
        for ks in range(4):
            stream.append(f"buffer_load_dwordx4 v[{KB+t*16+ks*4}:{KB+3+t*16+ks*4}], v4, s[76:79], s{52+t} offen offset:{ks*64} {NT}")
    for j in range(8):
        stream.append(f"buffer_load_dwordx4 v[{VB+j*4}:{VB+3+j*4}], v6, s[64:67], s{52+(j>>2)} offen offset:{(j&3)*256} {NT}")
    for x in stream[:NA]:
        a(x)
    stamp(a, 1)
    a(f"s_cmp_ge_u32 s2, 184\ns_cbranch_scc1 L_m_nop1\ns_waitcnt vmcnt({16+NA})")
    layernorm(a, 32)
    a(f"""
    v_lshlrev_b32 v7, 4, v1
    s_mul_i32 s55, s30, {XN_STRIDE}
    v_add_u32 v7, s55, v7
    ds_write_b128 v7, v[32:35] offset:{L_XN}
    v_and_b32 v58, 7, v2
    v_mul_u32_u24 v58, {XN_STRIDE}, v58
    v_lshl_add_u32 v58, v3, 4, v58
    s_lshl_b32 s55, s30, 7
    v_add_u32 v58, s55, v58
    s_waitcnt lgkmcnt(0)
    s_barrier
    ds_read_b128 v[60:63], v58 offset:{L_XN}
    ds_read_b128 v[64:67], v58 offset:{L_XN+64}
    s_waitcnt vmcnt({NA})
    """)
    for ks in range(2):
        for jj in range(4):
            a(f"v_perm_b32 v{70+ks*8+jj}, v{16+ks*8+2*jj+1}, v{16+ks*8+2*jj}, s58")
            a(f"v_perm_b32 v{74+ks*8+jj}, v{16+ks*8+2*jj+1}, v{16+ks*8+2*jj}, s59")
    for i in range(8):
        a(f"v_mov_b32 v{88+i}, 0")
    a(f"""
    s_waitcnt lgkmcnt(0)
    v_mfma_f32_16x16x32_bf16 v[88:91], v[60:63], v[70:73], v[88:91]
    v_mfma_f32_16x16x32_bf16 v[92:95], v[60:63], v[74:77], v[92:95]
    v_mfma_f32_16x16x32_bf16 v[88:91], v[64:67], v[78:81], v[88:91]
    v_mfma_f32_16x16x32_bf16 v[92:95], v[64:67], v[82:85], v[92:95]
    v_and_b32 v7, 1, v3
    v_lshlrev_b32 v7, 9, v7
    v_lshl_add_u32 v7, v2, 3, v7
    s_lshl_b32 s55, s30, 10
    s_add_u32 s55, s55, {L_RED}
    v_add_u32 v7, s55, v7
    s_nop 7
    """)
    for r in range(4):
        a(f"ds_write2_b32 v7, v{88+r}, v{92+r} offset0:{r*32} offset1:{r*32+1}")
    a("""
    s_waitcnt lgkmcnt(0)
    s_barrier
    s_branch L_m_p1done
    L_m_nop1:
    s_barrier
    s_barrier
    L_m_p1done:
    """)
    stamp(a, 2)
    LATE = int(os.environ.get("LATE", "0"))
    if LATE: a("s_barrier")
    for x in stream[NA:]:
        a(f"s_waitcnt vmcnt({WIN-1})\n" + x)
    a("s_lshr_b32 s61, s2, 3\ns_lshl_b32 s61, s61, 7")
    gemv_w_issue(a, WOB, 68, 61)
    a("""
    s_cmp_lt_u32 s2, 144
    s_cbranch_scc1 L_m_now2load
    s_sub_u32 s61, s2, 144
    s_lshr_b32 s61, s61, 3
    s_lshl_b32 s61, s61, 7
    """)
    gemv_w_issue(a, W2B, 72, 61)
    a("L_m_now2load:")
    if not LATE: a("s_barrier")
    stamp(a, 3)
    a(f"""
    v_and_b32 v5, 3, v2
    v_lshlrev_b32 v5, 8, v5
    v_lshl_add_u32 v5, v3, 4, v5
    """)
    for ks in range(4):
        a(f"ds_read_b128 v[{48+ks*4}:{51+ks*4}], v5 offset:{L_Q+ks*64}")
    S = 40
    for i in range(8):
        a(f"v_mov_b32 v{S+i}, 0")
    a("""
    s_cmp_lt_u32 s2, 144
    s_cbranch_scc1 L_m_wk0
    s_waitcnt vmcnt(24) lgkmcnt(0)
    s_branch L_m_wk1
    L_m_wk0:
    s_waitcnt vmcnt(16) lgkmcnt(0)
    L_m_wk1:
    """)
    for t in range(2):
        for ks in range(4):
            a(f"v_mfma_f32_16x16x32_bf16 v[{S+t*4}:{S+3+t*4}], v[{KB+t*16+ks*4}:{KB+3+t*16+ks*4}], v[{48+ks*4}:{51+ks*4}], v[{S+t*4}:{S+3+t*4}]")
    stamp(a, 4)
    a("s_nop 7\ns_nop 1\ns_mov_b32 s55, 0x3db504f3")
    for i in range(4):
        a(f"""
        v_cvt_pk_bf16_f32 v{64+i}, v{S+2*i}, v{S+1+2*i}
        v_lshlrev_b32 v{S+2*i}, 16, v{64+i}
        v_and_b32 v{S+1+2*i}, 0xffff0000, v{64+i}
        v_mul_f32 v{S+2*i}, s55, v{S+2*i}
        v_mul_f32 v{S+1+2*i}, s55, v{S+1+2*i}
        v_cvt_pk_bf16_f32 v{64+i}, v{S+2*i}, v{S+1+2*i}
        v_lshlrev_b32 v{S+2*i}, 16, v{64+i}
        v_and_b32 v{S+1+2*i}, 0xffff0000, v{64+i}
        """)
    a(f"""
    v_max3_f32 v68, v{S}, v{S+1}, v{S+2}
    v_max3_f32 v68, v68, v{S+3}, v{S+4}
    v_max3_f32 v68, v68, v{S+5}, v{S+6}
    v_max_f32 v68, v68, v{S+7}
    """)
    xg_reduce(a, 68, 69, "v_max_f32")
    a(f"""
    v_and_b32 v70, 3, v2
    v_lshlrev_b32 v70, 5, v70
    s_lshl_b32 s55, s30, 2
    v_add_u32 v71, s55, v70
    ds_write_b32 v71, v68 offset:{L_SM}
    s_waitcnt lgkmcnt(0)
    s_barrier
    ds_read_b128 v[72:75], v70 offset:{L_SM}
    ds_read_b128 v[76:79], v70 offset:{L_SM+16}
    s_waitcnt lgkmcnt(0)
    v_max3_f32 v68, v72, v73, v74
    v_max3_f32 v68, v68, v75, v76
    v_max3_f32 v68, v68, v77, v78
    v_max_f32 v68, v68, v79
    s_mov_b32 s55, 0x3fb8aa3b
    """)
    for i in range(8):
        a(f"v_sub_f32 v{S+i}, v{S+i}, v68\nv_mul_f32 v{S+i}, s55, v{S+i}\nv_exp_f32 v{S+i}, v{S+i}")
    a(f"s_nop 0\nv_add_f32 v84, v{S}, v{S+1}")
    for i in range(2, 8):
        a(f"v_add_f32 v84, v84, v{S+i}")
    for i in range(4):
        a(f"v_cvt_pk_bf16_f32 v{80+i}, v{S+2*i}, v{S+1+2*i}")
    xg_reduce(a, 84, 85, "v_add_f32")
    a(f"ds_write_b32 v71, v84 offset:{L_SM+128}")
    a("""
    s_cmp_lt_u32 s2, 144
    s_cbranch_scc1 L_m_wv0
    s_waitcnt vmcnt(16)
    s_branch L_m_wv1
    L_m_wv0:
    s_waitcnt vmcnt(8)
    L_m_wv1:
    """)
    stamp(a, 5)
    for e in range(8):
        for jj in range(4):
            a(f"v_perm_b32 v{KB+e*4+jj}, v{VB+(2*jj+1)*4+(e>>1)}, v{VB+(2*jj)*4+(e>>1)}, s{58+(e&1)}")
    for i in range(32):
        a(f"v_mov_b32 v{32+i}, 0")
    a("s_nop 1")
    for e in range(8):
        a(f"v_mfma_f32_16x16x32_bf16 v[{32+e*4}:{35+e*4}], v[80:83], v[{KB+e*4}:{KB+3+e*4}], v[{32+e*4}:{35+e*4}]")
    a("s_nop 7\ns_nop 1")
    for r in range(4):
        for e in range(8):
            a(f"v_mov_b32 v{64+r*8+e}, v{32+e*4+r}")
    a("""
    v_lshlrev_b32 v24, 5, v2
    s_lshl_b32 s55, s30, 11
    v_add_u32 v24, s55, v24
    v_cmp_gt_u32 vcc, 16, v1
    s_and_saveexec_b64 s[56:57], vcc
    """)
    for r in range(4):
        a(f"ds_write_b128 v24, v[{64+r*8}:{67+r*8}] offset:{L_ORED+r*512}\nds_write_b128 v24, v[{68+r*8}:{71+r*8}] offset:{L_ORED+r*512+16}")
    a(f"""
    s_mov_b64 exec, s[56:57]
    s_waitcnt lgkmcnt(0)
    s_barrier
    s_cmp_ge_u32 s30, 2
    s_cbranch_scc1 L_m_ml
    v_lshlrev_b32 v25, 4, v0
    """)
    for w in range(8):
        a(f"ds_read_b128 v[{32+4*w}:{35+4*w}], v25 offset:{L_ORED+w*2048}")
    a("s_waitcnt lgkmcnt(0)")
    for w in range(1, 8):
        for i in range(4):
            a(f"v_add_f32 v{32+i}, v{32+i}, v{32+4*w+i}")
    a(f"""
    s_lshl_b32 s55, s2, 11
    s_add_u32 s55, s55, {WS_O}
    buffer_store_dwordx4 v[32:35], v25, s[40:43], s55 offen {SC}
    s_branch L_m_pub
    L_m_ml:
    s_cmp_lg_u32 s30, 2
    s_cbranch_scc1 L_m_pub
    v_and_b32 v28, 3, v1
    v_lshlrev_b32 v28, 5, v28
    ds_read_b128 v[32:35], v28 offset:{L_SM}
    ds_read_b128 v[36:39], v28 offset:{L_SM+16}
    ds_read_b128 v[40:43], v28 offset:{L_SM+128}
    ds_read_b128 v[44:47], v28 offset:{L_SM+144}
    s_waitcnt lgkmcnt(0)
    v_max3_f32 v26, v32, v33, v34
    v_max3_f32 v26, v26, v35, v36
    v_max3_f32 v26, v26, v37, v38
    v_max_f32 v26, v26, v39
    v_add_f32 v27, v40, v41
    v_add_f32 v27, v27, v42
    v_add_f32 v27, v27, v43
    v_add_f32 v27, v27, v44
    v_add_f32 v27, v27, v45
    v_add_f32 v27, v27, v46
    v_add_f32 v27, v27, v47
    v_lshlrev_b32 v28, 3, v1
    s_lshl_b32 s55, s2, 5
    s_add_u32 s55, s55, {WS_ML}
    v_cmp_gt_u32 vcc, 4, v1
    s_and_saveexec_b64 s[56:57], vcc
    buffer_store_dwordx2 v[26:27], v28, s[40:43], s55 offen {SC}
    s_mov_b64 exec, s[56:57]
    L_m_pub:
    """)
    stamp(a, 6)
    a(f"""
    v_lshlrev_b32 v13, 8, v2
    v_add_u32 v13, {WS_CNT + 16*256}, v13
    s_mov_b32 s63, {SPIN}
    L_m_ib:
    buffer_load_dword v12, v13, s[40:43], 0 offen {SC}
    s_waitcnt vmcnt(0)
    v_cmp_gt_u32 vcc, 16, v12
    s_cmp_eq_u64 vcc, 0
    s_cbranch_scc1 L_m_ibd
    s_sleep {SLEEP}
    s_sub_u32 s63, s63, 1
    s_cmp_lg_u32 s63, 0
    s_cbranch_scc1 L_m_ib
    L_m_ibd:
    """)
    a(f"""
    s_and_b32 s54, s2, 7
    s_cmp_lt_u32 s2, 144
    s_cbranch_scc1 L_m_now2
    s_sub_u32 s61, s2, 144
    s_lshr_b32 s61, s61, 3
    v_and_b32 v5, 7, v2
    v_mul_u32_u24 v5, 3584, v5
    v_lshl_add_u32 v5, v3, 4, v5
    s_lshl_b32 s60, s61, 8
    s_and_b32 s56, s30, 3
    s_lshl_b32 s56, s56, 6
    s_add_u32 s60, s60, s56
    s_add_u32 s60, s60, {WS_H}
    """)
    poll_data(a, "h", [f"buffer_load_dwordx4 v[60:63], v5, s[40:43], s60 offen {SC}"], [60, 61, 62, 63])
    gemv_compute(a, W2B, 60, f"""s_lshl_b32 s55, s54, 3
    s_add_u32 s55, s55, s30
    s_lshl_b32 s55, s55, 4
    s_add_u32 s55, s55, s61
    s_lshl_b32 s55, s55, 8
    s_add_u32 s55, s55, {WS_P2}""", "")
    a("L_m_now2:")
    stamp(a, 7)
    a(f"""
    s_lshr_b32 s50, s2, 3
    s_lshl_b32 s55, s30, 5
    s_lshr_b32 s56, s50, 2
    s_lshl_b32 s56, s56, 2
    s_add_u32 s55, s55, s56
    s_and_b32 s57, s50, 3
    s_lshl_b32 s60, s55, 11
    s_lshl_b32 s61, s57, 9
    s_add_u32 s60, s60, s61
    s_add_u32 s60, s60, {WS_O}
    s_add_u32 s62, s60, 4096
    s_lshl_b32 s61, s55, 5
    s_lshl_b32 s56, s57, 3
    s_add_u32 s61, s61, s56
    s_add_u32 s61, s61, {WS_ML}
    v_lshlrev_b32 v5, 3, v1
    v_mov_b32 v6, 0
    """)
    lds = []
    for c in range(4):
        lds.append(f"buffer_load_dwordx2 v[{32+2*c}:{33+2*c}], v5, s[40:43], s{60 if c < 2 else 62} offen offset:{(c&1)*2048} {SC}")
    for c in range(4):
        lds.append(f"buffer_load_dwordx2 v[{40+2*c}:{41+2*c}], v6, s[40:43], s61 offen offset:{c*32} {SC}")
    poll_data(a, "o", lds, list(range(32, 48)))
    stamp(a, 8)
    a("""
    v_max3_f32 v48, v40, v42, v44
    v_max_f32 v48, v48, v46
    s_mov_b32 s55, 0x3fb8aa3b
    """)
    for c in range(4):
        a(f"v_sub_f32 v{50+c}, v{40+2*c}, v48\nv_mul_f32 v{50+c}, s55, v{50+c}\nv_exp_f32 v{50+c}, v{50+c}")
    a(f"""
    s_nop 0
    v_mul_f32 v49, v50, v41
    v_fmac_f32 v49, v51, v43
    v_fmac_f32 v49, v52, v45
    v_fmac_f32 v49, v53, v47
    v_mul_f32 v54, v50, v32
    v_mul_f32 v55, v50, v33
    v_fmac_f32 v54, v51, v34
    v_fmac_f32 v55, v51, v35
    v_fmac_f32 v54, v52, v36
    v_fmac_f32 v55, v52, v37
    v_fmac_f32 v54, v53, v38
    v_fmac_f32 v55, v53, v39
    v_rcp_f32 v49, v49
    s_nop 0
    v_mul_f32 v54, v54, v49
    v_mul_f32 v55, v55, v49
    v_cvt_pk_bf16_f32 v54, v54, v55
    s_mul_i32 s55, s30, 272
    v_lshlrev_b32 v5, 2, v1
    v_add_u32 v5, s55, v5
    ds_write_b32 v5, v54 offset:{L_OA}
    v_and_b32 v5, 7, v2
    v_mul_u32_u24 v5, 272, v5
    v_lshl_add_u32 v5, v3, 4, v5
    s_and_b32 s55, s30, 3
    s_lshl_b32 s55, s55, 6
    v_add_u32 v5, s55, v5
    s_waitcnt lgkmcnt(0)
    s_barrier
    ds_read_b128 v[60:63], v5 offset:{L_OA}
    """)
    stamp(a, 9)
    gemv_compute(a, WOB, 60, f"""s_lshl_b32 s55, s54, 3
    s_add_u32 s55, s55, s30
    s_lshl_b32 s55, s55, 5
    s_add_u32 s55, s55, s50
    s_lshl_b32 s55, s55, 8
    s_add_u32 s55, s55, {WS_P1}""", "s_waitcnt vmcnt(0) lgkmcnt(0)")
    stamp(a, 10)
    a(f"""
    s_cmp_lg_u32 s30, 0
    s_cbranch_scc1 L_end
    s_cmp_ge_u32 s2, 64
    s_cbranch_scc1 L_m_fin
    s_lshr_b32 s50, s2, 3
    s_lshl_b32 s55, s54, 3
    s_add_u32 s55, s55, s50
    s_lshl_b32 s60, s55, 13
    s_add_u32 s60, s60, {WS_P1}
    s_add_u32 s61, s60, 4096
    s_lshl_b32 s62, s55, 12
    s_add_u32 s62, s62, {WS_P2}
    v_lshlrev_b32 v5, 4, v1
    v_mov_b32 v60, 0
    v_mov_b32 v61, 0
    v_mov_b32 v62, 0
    v_mov_b32 v63, 0
    """)
    srd(a, 32, P_X, 8192)
    srd(a, 36, P_B2, 1024)
    srd(a, 76, P_OUT, 8192)
    a(f"""
    v_lshlrev_b32 v6, 3, v2
    s_lshl_b32 s57, s54, 7
    s_lshl_b32 s51, s50, 10
    s_add_u32 s51, s51, s57
    buffer_load_dwordx2 v[64:65], v6, s[32:35], s51 offen
    buffer_load_dwordx2 v[66:67], v6, s[36:39], s57 offen
    """)
    lds = []
    for i in range(8):
        lds.append(f"buffer_load_dwordx4 v[{16+4*i}:{19+4*i}], v5, s[40:43], s{60 + (i>>2)} offen offset:{(i&3)*1024} {SC}")
    for i in range(3):
        lds.append(f"buffer_load_dwordx4 v[{48+4*i}:{51+4*i}], v5, s[40:43], s62 offen offset:{i*1024} {SC}")
    lds.append(f"s_mov_b32 exec_hi, 0\nbuffer_load_dwordx4 v[60:63], v5, s[40:43], s62 offen offset:3072 {SC}\ns_mov_b64 exec, -1")
    poll_data(a, "f", lds, list(range(16, 64)))
    for i in range(1, 8):
        for k in range(4):
            a(f"v_add_f32 v{16+k}, v{16+k}, v{16+4*i+k}")
    for i in range(1, 4):
        for k in range(4):
            a(f"v_add_f32 v{48+k}, v{48+k}, v{48+4*i+k}")
    for k in range(4):
        xg_reduce(a, 16+k, 12, "v_add_f32")
        xg_reduce(a, 48+k, 12, "v_add_f32")
    for i in range(2):
        a(f"""
        v_cvt_pk_bf16_f32 v40, v{16+2*i}, v{17+2*i}
        v_lshlrev_b32 v41, 16, v40
        v_and_b32 v42, 0xffff0000, v40
        v_cvt_pk_bf16_f32 v40, v{48+2*i}, v{49+2*i}
        v_lshlrev_b32 v43, 16, v40
        v_and_b32 v44, 0xffff0000, v40
        v_lshlrev_b32 v45, 16, v{66+i}
        v_and_b32 v46, 0xffff0000, v{66+i}
        v_add_f32 v43, v43, v45
        v_add_f32 v44, v44, v46
        v_cvt_pk_bf16_f32 v40, v43, v44
        v_lshlrev_b32 v43, 16, v40
        v_and_b32 v44, 0xffff0000, v40
        """)
        silu_like(a, 43, 43, 45, "0xbfb8aa3b")
        silu_like(a, 44, 44, 45, "0xbfb8aa3b")
        a(f"""
        v_cvt_pk_bf16_f32 v40, v43, v44
        v_lshlrev_b32 v43, 16, v40
        v_and_b32 v44, 0xffff0000, v40
        v_mul_f32 v41, v41, v43
        v_mul_f32 v42, v42, v44
        v_cvt_pk_bf16_f32 v40, v41, v42
        v_lshlrev_b32 v41, 16, v40
        v_and_b32 v42, 0xffff0000, v40
        v_lshlrev_b32 v45, 16, v{64+i}
        v_and_b32 v46, 0xffff0000, v{64+i}
        v_add_f32 v41, v41, v45
        v_add_f32 v42, v42, v46
        v_cvt_pk_bf16_f32 v{68+i}, v41, v42
        """)
    a("""
    s_mov_b64 exec, 0xffff
    buffer_store_dwordx2 v[68:69], v6, s[76:79], s51 offen
    s_mov_b64 exec, -1
    L_m_fin:
    """)
    stamp(a, 11)
    stamp_flush(a, 0)
    a("s_branch L_end")
    a("L_service:")
    srd(a, 32, P_B1, 3584)
    a(f"""
    s_cmp_lt_u32 s2, 184
    s_cbranch_scc1 L_s_nozero
    v_mov_b32 v13, {61*4}
    v_mov_b32 v12, 1
    s_mov_b64 exec, 1
    buffer_atomic_add v12, v13, s[44:47], 0 offen sc0
    s_waitcnt vmcnt(0)
    s_mov_b64 exec, -1
    v_readfirstlane_b32 s62, v12
    s_cmp_lg_u32 s62, 0
    s_cbranch_scc1 L_s_nozero
    v_mov_b32 v8, 0
    v_lshlrev_b32 v7, 8, v1
    s_mov_b32 s55, {WS_CNT}
    buffer_store_dword v8, v7, s[40:43], s55 offen {SC}
    s_waitcnt vmcnt(0)
    v_mov_b32 v13, {63*4}
    v_mov_b32 v12, 1
    s_mov_b64 exec, 1
    buffer_atomic_add v12, v13, s[44:47], 0 offen
    s_mov_b64 exec, -1
    L_s_nozero:
    v_mov_b32 v8, -1
    v_mov_b32 v9, -1
    v_mov_b32 v10, -1
    v_mov_b32 v11, -1
    v_lshrrev_b32 v14, 3, v1
    v_and_b32 v15, 7, v1
    v_lshlrev_b32 v7, 4, v1
    s_lshl_b32 s55, s2, 11
    s_add_u32 s55, s55, {WS_O}
    buffer_store_dwordx4 v[8:11], v7, s[40:43], s55 offen {SC}
    buffer_store_dwordx4 v[8:11], v7, s[40:43], s55 offen offset:1024 {SC}
    v_lshlrev_b32 v6, 3, v1
    s_lshl_b32 s55, s2, 5
    s_add_u32 s55, s55, {WS_ML}
    s_mov_b64 exec, 0xf
    buffer_store_dwordx2 v[8:9], v6, s[40:43], s55 offen {SC}
    s_mov_b64 exec, -1
    s_and_b32 s54, s2, 7
    s_lshr_b32 s50, s2, 3
    s_lshl_b32 s55, s54, 8
    s_add_u32 s55, s55, s50
    s_lshl_b32 s55, s55, 8
    s_add_u32 s55, s55, {WS_P1}
    v_lshlrev_b32 v6, 13, v3
    v_lshl_add_u32 v6, v2, 4, v6
    buffer_store_dwordx4 v[8:11], v6, s[40:43], s55 offen {SC}
    s_add_u32 s55, s55, 32768
    buffer_store_dwordx4 v[8:11], v6, s[40:43], s55 offen {SC}
    s_cmp_lt_u32 s2, 144
    s_cbranch_scc1 L_s_noi2
    s_sub_u32 s51, s2, 144
    s_lshr_b32 s51, s51, 3
    s_lshl_b32 s55, s54, 7
    s_add_u32 s55, s55, s51
    s_lshl_b32 s55, s55, 8
    s_add_u32 s55, s55, {WS_P2}
    v_lshlrev_b32 v6, 12, v3
    v_lshl_add_u32 v6, v2, 4, v6
    buffer_store_dwordx4 v[8:11], v6, s[40:43], s55 offen {SC}
    s_add_u32 s55, s55, 16384
    buffer_store_dwordx4 v[8:11], v6, s[40:43], s55 offen {SC}
    L_s_noi2:
    s_cmp_ge_u32 s2, 184
    s_cbranch_scc1 L_s_noi3
    s_sub_u32 s61, s2, 128
    s_cmp_lt_u32 s2, 128
    s_cselect_b32 s61, s2, s61
    s_mov_b32 s52, 8192
    s_mov_b32 s53, 3584
    s_cselect_b32 s52, s52, s53
    s_cselect_b32 s53, 0, {WS_H}
    s_lshl_b32 s55, s61, 6
    s_add_u32 s53, s53, s55
    v_mul_lo_u32 v6, v14, s52
    v_lshl_add_u32 v6, v15, 3, v6
    s_cmp_lt_u32 s2, 128
    s_cbranch_scc1 L_s_noi3
    buffer_store_dwordx2 v[8:9], v6, s[40:43], s53 offen {SC}
    v_lshlrev_b32 v10, 3, v15
    buffer_load_dwordx2 v[22:23], v10, s[32:35], s55 offen
    L_s_noi3:
    s_barrier
    v_mov_b32 v13, {63*4}
    s_mov_b32 s63, {SPIN}
    L_s_pz:
    buffer_load_dword v12, v13, s[44:47], 0 offen {SC}
    s_waitcnt vmcnt(0)
    v_readfirstlane_b32 s55, v12
    s_cmp_ge_u32 s55, 1
    s_cbranch_scc1 L_s_pzd
    s_sleep {SLEEP}
    s_sub_u32 s63, s63, 1
    s_cmp_lg_u32 s63, 0
    s_cbranch_scc1 L_s_pz
    L_s_pzd:
    s_barrier
    """)
    stamp(a, 1)
    a(f"""
    s_cmp_ge_u32 s2, 184
    s_cbranch_scc1 L_s_nop1
    """)
    for w in range(8):
        a(f"ds_read_b128 v[{24+4*w}:{27+4*w}], v7 offset:{L_RED+w*1024}")
    a("s_waitcnt lgkmcnt(0)")
    for w in range(1, 8):
        for i in range(4):
            a(f"v_add_f32 v{24+i}, v{24+i}, v{24+4*w+i}")
    a(f"""
    v_cvt_pk_bf16_f32 v20, v24, v25
    v_cvt_pk_bf16_f32 v21, v26, v27
    s_cmp_lt_u32 s2, 128
    s_cbranch_scc1 L_s_pub
    s_waitcnt vmcnt(0)
    v_lshlrev_b32 v16, 16, v20
    v_and_b32 v17, 0xffff0000, v20
    v_lshlrev_b32 v18, 16, v21
    v_and_b32 v19, 0xffff0000, v21
    v_lshlrev_b32 v24, 16, v22
    v_and_b32 v25, 0xffff0000, v22
    v_lshlrev_b32 v26, 16, v23
    v_and_b32 v27, 0xffff0000, v23
    v_add_f32 v16, v16, v24
    v_add_f32 v17, v17, v25
    v_add_f32 v18, v18, v26
    v_add_f32 v19, v19, v27
    v_cvt_pk_bf16_f32 v20, v16, v17
    v_cvt_pk_bf16_f32 v21, v18, v19
    v_lshlrev_b32 v16, 16, v20
    v_and_b32 v17, 0xffff0000, v20
    v_lshlrev_b32 v18, 16, v21
    v_and_b32 v19, 0xffff0000, v21
    """)
    for i in range(4):
        gelu(a, 16+i, 24, 25)
    a(f"""
    v_cvt_pk_bf16_f32 v20, v16, v17
    v_cvt_pk_bf16_f32 v21, v18, v19
    L_s_pub:
    buffer_store_dwordx2 v[20:21], v6, s[40:43], s53 offen {SC}
    L_s_nop1:
    s_waitcnt vmcnt(0)
    """)
    stamp(a, 2)
    a(f"""
    s_lshr_b32 s55, s2, 4
    s_lshl_b32 s55, s55, 8
    s_add_u32 s55, s55, {WS_CNT}
    s_and_b32 s56, s2, 15
    s_lshl_b32 s56, s56, 8
    s_add_u32 s56, s56, {WS_CNT + 16*256}
    v_mov_b32 v12, 1
    s_mov_b64 exec, 1
    s_cmp_ge_u32 s2, 128
    s_cbranch_scc1 L_s_nosq
    v_mov_b32 v13, s55
    buffer_atomic_add v12, v13, s[40:43], 0 offen
    L_s_nosq:
    v_mov_b32 v13, s56
    buffer_atomic_add v12, v13, s[40:43], 0 offen
    s_mov_b64 exec, -1
    s_lshr_b32 s55, s2, 2
    s_and_b32 s55, s55, 7
    s_lshl_b32 s55, s55, 8
    s_add_u32 s55, s55, {WS_CNT}
    v_mov_b32 v13, s55
    s_mov_b32 s63, {SPIN}
    L_s_pq:
    buffer_load_dword v12, v13, s[40:43], 0 offen {SC}
    s_waitcnt vmcnt(0)
    v_readfirstlane_b32 s55, v12
    s_cmp_ge_u32 s55, 16
    s_cbranch_scc1 L_s_pqd
    s_sleep {SLEEP}
    s_sub_u32 s63, s63, 1
    s_cmp_lg_u32 s63, 0
    s_cbranch_scc1 L_s_pq
    L_s_pqd:
    """)
    stamp(a, 3)
    a(f"""
    s_lshr_b32 s55, s2, 2
    s_lshl_b32 s60, s55, 10
    buffer_load_dwordx4 v[16:19], v7, s[40:43], s60 offen {SC}
    s_waitcnt vmcnt(0)
    """)
    stamp(a, 4)
    a(f"""
    ds_write_b128 v7, v[16:19] offset:{L_Q}
    s_waitcnt lgkmcnt(0)
    """)
    stamp(a, 5)
    a("s_barrier")
    stamp_flush(a, 1)
    a("L_end:\ns_endpgm")
    return kernel_head(L) + a.text() + kernel_desc(L, 168)

def main():
    out = HEADER
    out += f"; @launch grid=(256,1,1) block=(576,1,1) lds={LDS_BYTES}\n"
    out += '.amdgcn_target "amdgcn-amd-amdhsa--gfx950"\n.text\n'
    out += gen()
    open(sys.argv[1], "w").write(out)
if __name__ == "__main__":
    main()
```

```python
import sys, os
from gen_common import *
from gen_base import layernorm, silu_like, gelu, XN_STRIDE

L_XN = 0
L_RED = 8448
L_Q = 16640
L_SM = 17664
L_ORED = 0
L_OA = 17920
L_RED2 = 20480
LDS_BYTES = 28672
SC = os.environ.get("SCF", "sc0 sc1")
NT = "sc1 nt"
SPIN = 2000000
WIN = int(os.environ.get("WIN", "3"))
NA = int(os.environ.get("NA", "4"))
SLEEP = int(os.environ.get("SLEEP", "1"))
STAMP = int(os.environ.get("STAMP", "0"))
WS_P1 = 0xC0000
WS_P2 = 0x140000
WS_STAMP = 0x200000
WS_CNT = 0x30000

def stamp(a, i):
    if not STAMP: return
    a(f"s_memrealtime s[80:81]\ns_waitcnt lgkmcnt(0)\ns_mov_b32 s{84+i}, s80")
def stamp_flush(a, role, n=12):
    if not STAMP: return
    a("v_mov_b32 v12, 0")
    for i in range(n):
        a(f"v_writelane_b32 v12, s{84+i}, {i}")
    a(f"""
    v_lshlrev_b32 v13, 2, v1
    s_lshl_b32 s55, s2, 7
    s_add_u32 s55, s55, {WS_STAMP + role*64}
    s_mov_b64 s[56:57], exec
    s_mov_b64 exec, 0xffff
    buffer_store_dword v12, v13, s[40:43], s55 offen
    s_mov_b64 exec, s[56:57]
    """)

def poll_data(a, tag, loads, regs, tmp=12):
    a(f"s_mov_b32 s63, {SPIN}\nL_pd_{tag}:")
    for l in loads: a(l)
    a("s_waitcnt vmcnt(0)")
    rs = list(regs)
    first = True
    a(f"v_max_u32 v{tmp}, v{rs[0]}, v{rs[1]}" if len(rs) > 1 else f"v_mov_b32 v{tmp}, v{rs[0]}")
    i = 2
    while i < len(rs):
        if i + 1 < len(rs):
            a(f"v_max3_u32 v{tmp}, v{tmp}, v{rs[i]}, v{rs[i+1]}"); i += 2
        else:
            a(f"v_max_u32 v{tmp}, v{tmp}, v{rs[i]}"); i += 1
    a(f"""
    v_cmp_eq_u32 vcc, -1, v{tmp}
    s_cmp_eq_u64 vcc, 0
    s_cbranch_scc1 L_pdd_{tag}
    s_sleep {SLEEP}
    s_sub_u32 s63, s63, 1
    s_cmp_lg_u32 s63, 0
    s_cbranch_scc1 L_pd_{tag}
    L_pdd_{tag}:
    """)

def gemv_w_issue(a, vbase, srdn, row0_sgpr):
    a(f"""
    s_and_b32 s55, s30, 3
    s_lshl_b32 s55, s55, 5
    s_add_u32 s55, s55, s{row0_sgpr}
    s_lshl_b32 s55, s55, 10
    s_and_b32 s56, s2, 7
    s_lshl_b32 s56, s56, 7
    s_add_u32 s55, s55, s56
    s_lshr_b32 s56, s30, 2
    s_lshl_b32 s56, s56, 6
    s_add_u32 s55, s55, s56
    v_lshlrev_b32 v7, 13, v3
    v_lshl_add_u32 v7, v2, 2, v7
    """)
    for j in range(4):
        a(f"buffer_load_dword v{vbase+j}, v7, s[{srdn}:{srdn+3}], s55 offen offset:{j*1024} {NT}")
    a("s_add_u32 s55, s55, 4096")
    for j in range(4):
        a(f"buffer_load_dword v{vbase+4+j}, v7, s[{srdn}:{srdn+3}], s55 offen offset:{j*1024} {NT}")

def gemv_compute(a, vw, va, out_soff_code, wait_a):
    for jj in range(4):
        a(f"v_perm_b32 v{70+jj}, v{vw+2*jj+1}, v{vw+2*jj}, s58")
        a(f"v_perm_b32 v{74+jj}, v{vw+2*jj+1}, v{vw+2*jj}, s59")
    for i in range(8):
        a(f"v_mov_b32 v{88+i}, 0")
    a(f"""
    {wait_a}
    v_mfma_f32_16x16x32_bf16 v[88:91], v[{va}:{va+3}], v[70:73], v[88:91]
    v_mfma_f32_16x16x32_bf16 v[92:95], v[{va}:{va+3}], v[74:77], v[92:95]
    v_and_b32 v7, 1, v3
    v_lshlrev_b32 v7, 10, v7
    v_lshl_add_u32 v7, v2, 3, v7
    s_and_b32 s55, s30, 3
    s_lshl_b32 s55, s55, 11
    s_lshr_b32 s56, s30, 2
    s_lshl_b32 s56, s56, 7
    s_add_u32 s55, s55, s56
    s_add_u32 s55, s55, {L_RED2}
    v_add_u32 v7, s55, v7
    s_nop 7
    """)
    for r in range(4):
        a(f"ds_write2_b32 v7, v{88+r}, v{92+r} offset0:{r*64} offset1:{r*64+1}")
    a(f"""
    s_waitcnt lgkmcnt(0)
    s_barrier
    v_lshlrev_b32 v7, 2, v0
    ds_read_b32 v64, v7 offset:{L_RED2}
    ds_read_b32 v65, v7 offset:{L_RED2+2048}
    ds_read_b32 v66, v7 offset:{L_RED2+4096}
    ds_read_b32 v67, v7 offset:{L_RED2+6144}
    v_lshlrev_b32 v68, 2, v1
    {out_soff_code}
    s_waitcnt lgkmcnt(0)
    v_add_f32 v64, v64, v65
    v_add_f32 v66, v66, v67
    v_add_f32 v64, v64, v66
    buffer_store_dword v64, v68, s[40:43], s55 offen {SC}
    """)

def gen():
    a = Asm()
    L = NAME + "_kernel"
    KB, VB, W2B, WOB = 104, 136, 16, 96
    a("s_cmp_ge_u32 s2, 256\ns_cbranch_scc1 L_end")
    prologue(a)
    a("""
    v_and_b32 v1, 63, v0
    v_lshrrev_b32 v6, 6, v0
    v_and_b32 v2, 15, v1
    v_readfirstlane_b32 s30, v6
    v_lshrrev_b32 v3, 4, v1
    s_mov_b32 s58, 0x05040100
    s_mov_b32 s59, 0x07060302
    s_waitcnt lgkmcnt(0)
    """)
    srd(a, 40, P_WS, WS_SIZE)
    srd(a, 44, P_DBG, 256)
    stamp(a, 0)
    a("s_cmp_eq_u32 s30, 8\ns_cbranch_scc1 L_service")
    a("s_cmp_ge_u32 s2, 184\ns_cbranch_scc1 L_m_nop1load")
    a("""
    s_mov_b32 s52, 8192
    s_mov_b32 s53, 3584
    s_sub_u32 s54, s2, 128
    s_cmp_lt_u32 s2, 128
    s_cselect_b32 s32, s10, s16
    s_cselect_b32 s33, s11, s17
    s_cselect_b32 s31, s52, s53
    s_cselect_b32 s54, s2, s54
    s_and_b32 s33, s33, 0xffff
    s_lshl_b32 s34, s31, 9
    s_mov_b32 s35, 0x20000
    """)
    srd(a, 36, P_X, 8192)
    a("""
    v_lshlrev_b32 v5, 4, v1
    s_lshl_b32 s55, s30, 10
    v_add_u32 v5, s55, v5
    buffer_load_dwordx4 v[32:35], v5, s[36:39], 0 offen
    v_mul_lo_u32 v4, v3, s31
    v_lshlrev_b32 v4, 3, v4
    v_lshl_add_u32 v4, v2, 2, v4
    s_mul_i32 s55, s30, s31
    s_lshl_b32 s55, s55, 6
    s_lshl_b32 s56, s54, 6
    s_add_u32 s55, s55, s56
    v_add_u32 v4, s55, v4
    s_mov_b32 s56, 0
    s_mul_i32 s57, s31, 24
    """)
    for ks in range(2):
        for j in range(8):
            a(f"buffer_load_dword v{16+ks*8+j}, v4, s[32:35], s56 offen {NT}\ns_add_u32 s56, s56, s31")
        if ks == 0:
            a("s_add_u32 s56, s56, s57")
    a("L_m_nop1load:")
    srd(a, 76, P_K, 0x4000000)
    srd(a, 64, P_V, 0x4000000)
    srd(a, 68, P_WO, 4096*1024)
    srd(a, 72, P_W2, 1792*1024)
    a("""
    s_lshr_b32 s50, s2, 2
    s_and_b32 s51, s2, 3
    s_lshl_b32 s52, s50, 20
    s_lshl_b32 s53, s51, 16
    s_add_u32 s52, s52, s53
    s_lshl_b32 s53, s30, 13
    s_add_u32 s52, s52, s53
    s_add_u32 s52, s52, 0xC0000
    s_add_u32 s53, s52, 4096
    v_lshlrev_b32 v4, 8, v2
    v_lshl_add_u32 v4, v3, 4, v4
    v_lshlrev_b32 v6, 10, v3
    v_lshl_add_u32 v6, v2, 4, v6
    """)
    stream = []
    for t in range(2):
        for ks in range(4):
            stream.append(f"buffer_load_dwordx4 v[{KB+t*16+ks*4}:{KB+3+t*16+ks*4}], v4, s[76:79], s{52+t} offen offset:{ks*64} {NT}")
    for j in range(8):
        stream.append(f"buffer_load_dwordx4 v[{VB+j*4}:{VB+3+j*4}], v6, s[64:67], s{52+(j>>2)} offen offset:{(j&3)*256} {NT}")
    for x in stream[:NA]:
        a(x)
    stamp(a, 1)
    a(f"s_cmp_ge_u32 s2, 184\ns_cbranch_scc1 L_m_nop1\ns_waitcnt vmcnt({16+NA})")
    layernorm(a, 32)
    a(f"""
    v_lshlrev_b32 v7, 4, v1
    s_mul_i32 s55, s30, {XN_STRIDE}
    v_add_u32 v7, s55, v7
    ds_write_b128 v7, v[32:35] offset:{L_XN}
    v_and_b32 v58, 7, v2
    v_mul_u32_u24 v58, {XN_STRIDE}, v58
    v_lshl_add_u32 v58, v3, 4, v58
    s_lshl_b32 s55, s30, 7
    v_add_u32 v58, s55, v58
    s_waitcnt lgkmcnt(0)
    s_barrier
    ds_read_b128 v[60:63], v58 offset:{L_XN}
    ds_read_b128 v[64:67], v58 offset:{L_XN+64}
    s_waitcnt vmcnt({NA})
    """)
    for ks in range(2):
        for jj in range(4):
            a(f"v_perm_b32 v{70+ks*8+jj}, v{16+ks*8+2*jj+1}, v{16+ks*8+2*jj}, s58")
            a(f"v_perm_b32 v{74+ks*8+jj}, v{16+ks*8+2*jj+1}, v{16+ks*8+2*jj}, s59")
    for i in range(8):
        a(f"v_mov_b32 v{88+i}, 0")
    a(f"""
    s_waitcnt lgkmcnt(0)
    v_mfma_f32_16x16x32_bf16 v[88:91], v[60:63], v[70:73], v[88:91]
    v_mfma_f32_16x16x32_bf16 v[92:95], v[60:63], v[74:77], v[92:95]
    v_mfma_f32_16x16x32_bf16 v[88:91], v[64:67], v[78:81], v[88:91]
    v_mfma_f32_16x16x32_bf16 v[92:95], v[64:67], v[82:85], v[92:95]
    v_and_b32 v7, 1, v3
    v_lshlrev_b32 v7, 9, v7
    v_lshl_add_u32 v7, v2, 3, v7
    s_lshl_b32 s55, s30, 10
    s_add_u32 s55, s55, {L_RED}
    v_add_u32 v7, s55, v7
    s_nop 7
    """)
    for r in range(4):
        a(f"ds_write2_b32 v7, v{88+r}, v{92+r} offset0:{r*32} offset1:{r*32+1}")
    a("""
    s_waitcnt lgkmcnt(0)
    s_barrier
    s_branch L_m_p1done
    L_m_nop1:
    s_barrier
    s_barrier
    L_m_p1done:
    """)
    stamp(a, 2)
    LATE = int(os.environ.get("LATE", "0"))
    if LATE: a("s_barrier")
    for x in stream[NA:]:
        a(f"s_waitcnt vmcnt({WIN-1})\n" + x)
    a("s_lshr_b32 s61, s2, 3\ns_lshl_b32 s61, s61, 7")
    gemv_w_issue(a, WOB, 68, 61)
    a("""
    s_cmp_lt_u32 s2, 144
    s_cbranch_scc1 L_m_now2load
    s_sub_u32 s61, s2, 144
    s_lshr_b32 s61, s61, 3
    s_lshl_b32 s61, s61, 7
    """)
    gemv_w_issue(a, W2B, 72, 61)
    a("L_m_now2load:")
    if not LATE: a("s_barrier")
    stamp(a, 3)
    a(f"""
    v_and_b32 v5, 3, v2
    v_lshlrev_b32 v5, 8, v5
    v_lshl_add_u32 v5, v3, 4, v5
    """)
    for ks in range(4):
        a(f"ds_read_b128 v[{48+ks*4}:{51+ks*4}], v5 offset:{L_Q+ks*64}")
    S = 40
    for i in range(8):
        a(f"v_mov_b32 v{S+i}, 0")
    a("""
    s_cmp_lt_u32 s2, 144
    s_cbranch_scc1 L_m_wk0
    s_waitcnt vmcnt(24) lgkmcnt(0)
    s_branch L_m_wk1
    L_m_wk0:
    s_waitcnt vmcnt(16) lgkmcnt(0)
    L_m_wk1:
    """)
    for t in range(2):
        for ks in range(4):
            a(f"v_mfma_f32_16x16x32_bf16 v[{S+t*4}:{S+3+t*4}], v[{KB+t*16+ks*4}:{KB+3+t*16+ks*4}], v[{48+ks*4}:{51+ks*4}], v[{S+t*4}:{S+3+t*4}]")
    stamp(a, 4)
    a("s_nop 7\ns_nop 1\ns_mov_b32 s55, 0x3db504f3")
    for i in range(4):
        a(f"""
        v_cvt_pk_bf16_f32 v{64+i}, v{S+2*i}, v{S+1+2*i}
        v_lshlrev_b32 v{S+2*i}, 16, v{64+i}
        v_and_b32 v{S+1+2*i}, 0xffff0000, v{64+i}
        v_mul_f32 v{S+2*i}, s55, v{S+2*i}
        v_mul_f32 v{S+1+2*i}, s55, v{S+1+2*i}
        v_cvt_pk_bf16_f32 v{64+i}, v{S+2*i}, v{S+1+2*i}
        v_lshlrev_b32 v{S+2*i}, 16, v{64+i}
        v_and_b32 v{S+1+2*i}, 0xffff0000, v{64+i}
        """)
    a(f"""
    v_max3_f32 v68, v{S}, v{S+1}, v{S+2}
    v_max3_f32 v68, v68, v{S+3}, v{S+4}
    v_max3_f32 v68, v68, v{S+5}, v{S+6}
    v_max_f32 v68, v68, v{S+7}
    """)
    xg_reduce(a, 68, 69, "v_max_f32")
    a(f"""
    v_and_b32 v70, 3, v2
    v_lshlrev_b32 v70, 5, v70
    s_lshl_b32 s55, s30, 2
    v_add_u32 v71, s55, v70
    ds_write_b32 v71, v68 offset:{L_SM}
    s_waitcnt lgkmcnt(0)
    s_barrier
    ds_read_b128 v[72:75], v70 offset:{L_SM}
    ds_read_b128 v[76:79], v70 offset:{L_SM+16}
    s_waitcnt lgkmcnt(0)
    v_max3_f32 v68, v72, v73, v74
    v_max3_f32 v68, v68, v75, v76
    v_max3_f32 v68, v68, v77, v78
    v_max_f32 v68, v68, v79
    s_mov_b32 s55, 0x3fb8aa3b
    """)
    for i in range(8):
        a(f"v_sub_f32 v{S+i}, v{S+i}, v68\nv_mul_f32 v{S+i}, s55, v{S+i}\nv_exp_f32 v{S+i}, v{S+i}")
    a(f"s_nop 0\nv_add_f32 v84, v{S}, v{S+1}")
    for i in range(2, 8):
        a(f"v_add_f32 v84, v84, v{S+i}")
    for i in range(4):
        a(f"v_cvt_pk_bf16_f32 v{80+i}, v{S+2*i}, v{S+1+2*i}")
    xg_reduce(a, 84, 85, "v_add_f32")
    a(f"ds_write_b32 v71, v84 offset:{L_SM+128}")
    a("""
    s_cmp_lt_u32 s2, 144
    s_cbranch_scc1 L_m_wv0
    s_waitcnt vmcnt(16)
    s_branch L_m_wv1
    L_m_wv0:
    s_waitcnt vmcnt(8)
    L_m_wv1:
    """)
    stamp(a, 5)
    for e in range(8):
        for jj in range(4):
            a(f"v_perm_b32 v{KB+e*4+jj}, v{VB+(2*jj+1)*4+(e>>1)}, v{VB+(2*jj)*4+(e>>1)}, s{58+(e&1)}")
    for i in range(32):
        a(f"v_mov_b32 v{32+i}, 0")
    a("s_nop 1")
    for e in range(8):
        a(f"v_mfma_f32_16x16x32_bf16 v[{32+e*4}:{35+e*4}], v[80:83], v[{KB+e*4}:{KB+3+e*4}], v[{32+e*4}:{35+e*4}]")
    a("s_nop 7\ns_nop 1")
    for r in range(4):
        for e in range(8):
            a(f"v_mov_b32 v{64+r*8+e}, v{32+e*4+r}")
    a("""
    v_lshlrev_b32 v24, 5, v2
    s_lshl_b32 s55, s30, 11
    v_add_u32 v24, s55, v24
    v_cmp_gt_u32 vcc, 16, v1
    s_and_saveexec_b64 s[56:57], vcc
    """)
    for r in range(4):
        a(f"ds_write_b128 v24, v[{64+r*8}:{67+r*8}] offset:{L_ORED+r*512}\nds_write_b128 v24, v[{68+r*8}:{71+r*8}] offset:{L_ORED+r*512+16}")
    a(f"""
    s_mov_b64 exec, s[56:57]
    s_waitcnt lgkmcnt(0)
    s_barrier
    s_cmp_ge_u32 s30, 2
    s_cbranch_scc1 L_m_ml
    v_lshlrev_b32 v25, 4, v0
    """)
    for w in range(8):
        a(f"ds_read_b128 v[{32+4*w}:{35+4*w}], v25 offset:{L_ORED+w*2048}")
    a("s_waitcnt lgkmcnt(0)")
    for w in range(1, 8):
        for i in range(4):
            a(f"v_add_f32 v{32+i}, v{32+i}, v{32+4*w+i}")
    a(f"""
    s_lshl_b32 s55, s2, 11
    s_add_u32 s55, s55, {WS_O}
    buffer_store_dwordx4 v[32:35], v25, s[40:43], s55 offen {SC}
    s_branch L_m_pub
    L_m_ml:
    s_cmp_lg_u32 s30, 2
    s_cbranch_scc1 L_m_pub
    v_and_b32 v28, 3, v1
    v_lshlrev_b32 v28, 5, v28
    ds_read_b128 v[32:35], v28 offset:{L_SM}
    ds_read_b128 v[36:39], v28 offset:{L_SM+16}
    ds_read_b128 v[40:43], v28 offset:{L_SM+128}
    ds_read_b128 v[44:47], v28 offset:{L_SM+144}
    s_waitcnt lgkmcnt(0)
    v_max3_f32 v26, v32, v33, v34
    v_max3_f32 v26, v26, v35, v36
    v_max3_f32 v26, v26, v37, v38
    v_max_f32 v26, v26, v39
    v_add_f32 v27, v40, v41
    v_add_f32 v27, v27, v42
    v_add_f32 v27, v27, v43
    v_add_f32 v27, v27, v44
    v_add_f32 v27, v27, v45
    v_add_f32 v27, v27, v46
    v_add_f32 v27, v27, v47
    v_lshlrev_b32 v28, 3, v1
    s_lshl_b32 s55, s2, 5
    s_add_u32 s55, s55, {WS_ML}
    v_cmp_gt_u32 vcc, 4, v1
    s_and_saveexec_b64 s[56:57], vcc
    buffer_store_dwordx2 v[26:27], v28, s[40:43], s55 offen {SC}
    s_mov_b64 exec, s[56:57]
    L_m_pub:
    """)
    stamp(a, 6)
    a(f"""
    v_lshlrev_b32 v13, 8, v2
    v_add_u32 v13, {WS_CNT + 16*256}, v13
    s_mov_b32 s63, {SPIN}
    L_m_ib:
    buffer_load_dword v12, v13, s[40:43], 0 offen {SC}
    s_waitcnt vmcnt(0)
    v_cmp_gt_u32 vcc, 16, v12
    s_cmp_eq_u64 vcc, 0
    s_cbranch_scc1 L_m_ibd
    s_sleep {SLEEP}
    s_sub_u32 s63, s63, 1
    s_cmp_lg_u32 s63, 0
    s_cbranch_scc1 L_m_ib
    L_m_ibd:
    """)
    a(f"""
    s_and_b32 s54, s2, 7
    s_cmp_lt_u32 s2, 144
    s_cbranch_scc1 L_m_now2
    s_sub_u32 s61, s2, 144
    s_lshr_b32 s61, s61, 3
    v_and_b32 v5, 7, v2
    v_mul_u32_u24 v5, 3584, v5
    v_lshl_add_u32 v5, v3, 4, v5
    s_lshl_b32 s60, s61, 8
    s_and_b32 s56, s30, 3
    s_lshl_b32 s56, s56, 6
    s_add_u32 s60, s60, s56
    s_add_u32 s60, s60, {WS_H}
    """)
    poll_data(a, "h", [f"buffer_load_dwordx4 v[60:63], v5, s[40:43], s60 offen {SC}"], [60, 61, 62, 63])
    gemv_compute(a, W2B, 60, f"""s_lshl_b32 s55, s54, 3
    s_add_u32 s55, s55, s30
    s_lshl_b32 s55, s55, 4
    s_add_u32 s55, s55, s61
    s_lshl_b32 s55, s55, 8
    s_add_u32 s55, s55, {WS_P2}""", "")
    a("L_m_now2:")
    stamp(a, 7)
    a(f"""
    s_lshr_b32 s50, s2, 3
    s_lshl_b32 s55, s30, 5
    s_lshr_b32 s56, s50, 2
    s_lshl_b32 s56, s56, 2
    s_add_u32 s55, s55, s56
    s_and_b32 s57, s50, 3
    s_lshl_b32 s60, s55, 11
    s_lshl_b32 s61, s57, 9
    s_add_u32 s60, s60, s61
    s_add_u32 s60, s60, {WS_O}
    s_add_u32 s62, s60, 4096
    s_lshl_b32 s61, s55, 5
    s_lshl_b32 s56, s57, 3
    s_add_u32 s61, s61, s56
    s_add_u32 s61, s61, {WS_ML}
    v_lshlrev_b32 v5, 3, v1
    v_mov_b32 v6, 0
    """)
    lds = []
    for c in range(4):
        lds.append(f"buffer_load_dwordx2 v[{32+2*c}:{33+2*c}], v5, s[40:43], s{60 if c < 2 else 62} offen offset:{(c&1)*2048} {SC}")
    for c in range(4):
        lds.append(f"buffer_load_dwordx2 v[{40+2*c}:{41+2*c}], v6, s[40:43], s61 offen offset:{c*32} {SC}")
    poll_data(a, "o", lds, list(range(32, 48)))
    stamp(a, 8)
    a("""
    v_max3_f32 v48, v40, v42, v44
    v_max_f32 v48, v48, v46
    s_mov_b32 s55, 0x3fb8aa3b
    """)
    for c in range(4):
        a(f"v_sub_f32 v{50+c}, v{40+2*c}, v48\nv_mul_f32 v{50+c}, s55, v{50+c}\nv_exp_f32 v{50+c}, v{50+c}")
    a(f"""
    s_nop 0
    v_mul_f32 v49, v50, v41
    v_fmac_f32 v49, v51, v43
    v_fmac_f32 v49, v52, v45
    v_fmac_f32 v49, v53, v47
    v_mul_f32 v54, v50, v32
    v_mul_f32 v55, v50, v33
    v_fmac_f32 v54, v51, v34
    v_fmac_f32 v55, v51, v35
    v_fmac_f32 v54, v52, v36
    v_fmac_f32 v55, v52, v37
    v_fmac_f32 v54, v53, v38
    v_fmac_f32 v55, v53, v39
    v_rcp_f32 v49, v49
    s_nop 0
    v_mul_f32 v54, v54, v49
    v_mul_f32 v55, v55, v49
    v_cvt_pk_bf16_f32 v54, v54, v55
    s_mul_i32 s55, s30, 272
    v_lshlrev_b32 v5, 2, v1
    v_add_u32 v5, s55, v5
    ds_write_b32 v5, v54 offset:{L_OA}
    v_and_b32 v5, 7, v2
    v_mul_u32_u24 v5, 272, v5
    v_lshl_add_u32 v5, v3, 4, v5
    s_and_b32 s55, s30, 3
    s_lshl_b32 s55, s55, 6
    v_add_u32 v5, s55, v5
    s_waitcnt lgkmcnt(0)
    s_barrier
    ds_read_b128 v[60:63], v5 offset:{L_OA}
    """)
    stamp(a, 9)
    gemv_compute(a, WOB, 60, f"""s_lshl_b32 s55, s54, 3
    s_add_u32 s55, s55, s30
    s_lshl_b32 s55, s55, 5
    s_add_u32 s55, s55, s50
    s_lshl_b32 s55, s55, 8
    s_add_u32 s55, s55, {WS_P1}""", "s_waitcnt vmcnt(0) lgkmcnt(0)")
    stamp(a, 10)
    a(f"""
    s_cmp_lg_u32 s30, 0
    s_cbranch_scc1 L_end
    s_cmp_ge_u32 s2, 64
    s_cbranch_scc1 L_m_fin
    s_lshr_b32 s50, s2, 3
    s_lshl_b32 s55, s54, 3
    s_add_u32 s55, s55, s50
    s_lshl_b32 s60, s55, 13
    s_add_u32 s60, s60, {WS_P1}
    s_add_u32 s61, s60, 4096
    s_lshl_b32 s62, s55, 12
    s_add_u32 s62, s62, {WS_P2}
    v_lshlrev_b32 v5, 4, v1
    v_mov_b32 v60, 0
    v_mov_b32 v61, 0
    v_mov_b32 v62, 0
    v_mov_b32 v63, 0
    """)
    srd(a, 32, P_X, 8192)
    srd(a, 36, P_B2, 1024)
    srd(a, 76, P_OUT, 8192)
    a(f"""
    v_lshlrev_b32 v6, 3, v2
    s_lshl_b32 s57, s54, 7
    s_lshl_b32 s51, s50, 10
    s_add_u32 s51, s51, s57
    buffer_load_dwordx2 v[64:65], v6, s[32:35], s51 offen
    buffer_load_dwordx2 v[66:67], v6, s[36:39], s57 offen
    """)
    lds = []
    for i in range(8):
        lds.append(f"buffer_load_dwordx4 v[{16+4*i}:{19+4*i}], v5, s[40:43], s{60 + (i>>2)} offen offset:{(i&3)*1024} {SC}")
    for i in range(3):
        lds.append(f"buffer_load_dwordx4 v[{48+4*i}:{51+4*i}], v5, s[40:43], s62 offen offset:{i*1024} {SC}")
    lds.append(f"s_mov_b32 exec_hi, 0\nbuffer_load_dwordx4 v[60:63], v5, s[40:43], s62 offen offset:3072 {SC}\ns_mov_b64 exec, -1")
    poll_data(a, "f", lds, list(range(16, 64)))
    for i in range(1, 8):
        for k in range(4):
            a(f"v_add_f32 v{16+k}, v{16+k}, v{16+4*i+k}")
    for i in range(1, 4):
        for k in range(4):
            a(f"v_add_f32 v{48+k}, v{48+k}, v{48+4*i+k}")
    for k in range(4):
        xg_reduce(a, 16+k, 12, "v_add_f32")
        xg_reduce(a, 48+k, 12, "v_add_f32")
    for i in range(2):
        a(f"""
        v_cvt_pk_bf16_f32 v40, v{16+2*i}, v{17+2*i}
        v_lshlrev_b32 v41, 16, v40
        v_and_b32 v42, 0xffff0000, v40
        v_cvt_pk_bf16_f32 v40, v{48+2*i}, v{49+2*i}
        v_lshlrev_b32 v43, 16, v40
        v_and_b32 v44, 0xffff0000, v40
        v_lshlrev_b32 v45, 16, v{66+i}
        v_and_b32 v46, 0xffff0000, v{66+i}
        v_add_f32 v43, v43, v45
        v_add_f32 v44, v44, v46
        v_cvt_pk_bf16_f32 v40, v43, v44
        v_lshlrev_b32 v43, 16, v40
        v_and_b32 v44, 0xffff0000, v40
        """)
        silu_like(a, 43, 43, 45, "0xbfb8aa3b")
        silu_like(a, 44, 44, 45, "0xbfb8aa3b")
        a(f"""
        v_cvt_pk_bf16_f32 v40, v43, v44
        v_lshlrev_b32 v43, 16, v40
        v_and_b32 v44, 0xffff0000, v40
        v_mul_f32 v41, v41, v43
        v_mul_f32 v42, v42, v44
        v_cvt_pk_bf16_f32 v40, v41, v42
        v_lshlrev_b32 v41, 16, v40
        v_and_b32 v42, 0xffff0000, v40
        v_lshlrev_b32 v45, 16, v{64+i}
        v_and_b32 v46, 0xffff0000, v{64+i}
        v_add_f32 v41, v41, v45
        v_add_f32 v42, v42, v46
        v_cvt_pk_bf16_f32 v{68+i}, v41, v42
        """)
    a("""
    s_mov_b64 exec, 0xffff
    buffer_store_dwordx2 v[68:69], v6, s[76:79], s51 offen
    s_mov_b64 exec, -1
    L_m_fin:
    """)
    stamp(a, 11)
    stamp_flush(a, 0)
    a("s_branch L_end")
    a("L_service:")
    srd(a, 32, P_B1, 3584)
    a(f"""
    s_cmp_lt_u32 s2, 184
    s_cbranch_scc1 L_s_nozero
    v_mov_b32 v13, {61*4}
    v_mov_b32 v12, 1
    s_mov_b64 exec, 1
    buffer_atomic_add v12, v13, s[44:47], 0 offen sc0
    s_waitcnt vmcnt(0)
    s_mov_b64 exec, -1
    v_readfirstlane_b32 s62, v12
    s_cmp_ge_u32 s62, 8
    s_cbranch_scc1 L_s_nozero
    v_mov_b32 v8, 0
    v_lshlrev_b32 v7, 8, v1
    s_mov_b32 s55, {WS_CNT}
    s_cmp_lg_u32 s62, 0
    s_cbranch_scc1 L_s_noz0
    buffer_store_dword v8, v7, s[40:43], s55 offen {SC}
    L_s_noz0:
    v_mov_b32 v8, -1
    v_mov_b32 v9, -1
    v_mov_b32 v10, -1
    v_mov_b32 v11, -1
    v_lshlrev_b32 v7, 4, v1
    s_lshl_b32 s55, s62, 13
    s_add_u32 s56, s55, 4096
    buffer_store_dwordx4 v[8:11], v7, s[40:43], s55 offen {SC}
    buffer_store_dwordx4 v[8:11], v7, s[40:43], s55 offen offset:1024 {SC}
    buffer_store_dwordx4 v[8:11], v7, s[40:43], s55 offen offset:2048 {SC}
    buffer_store_dwordx4 v[8:11], v7, s[40:43], s55 offen offset:3072 {SC}
    buffer_store_dwordx4 v[8:11], v7, s[40:43], s56 offen {SC}
    buffer_store_dwordx4 v[8:11], v7, s[40:43], s56 offen offset:1024 {SC}
    buffer_store_dwordx4 v[8:11], v7, s[40:43], s56 offen offset:2048 {SC}
    buffer_store_dwordx4 v[8:11], v7, s[40:43], s56 offen offset:3072 {SC}
    s_waitcnt vmcnt(0)
    v_mov_b32 v13, {63*4}
    v_mov_b32 v12, 1
    s_mov_b64 exec, 1
    buffer_atomic_add v12, v13, s[44:47], 0 offen
    s_mov_b64 exec, -1
    L_s_nozero:
    v_mov_b32 v8, -1
    v_mov_b32 v9, -1
    v_mov_b32 v10, -1
    v_mov_b32 v11, -1
    v_lshrrev_b32 v14, 3, v1
    v_and_b32 v15, 7, v1
    v_lshlrev_b32 v7, 4, v1
    s_lshl_b32 s55, s2, 11
    s_add_u32 s55, s55, {WS_O}
    buffer_store_dwordx4 v[8:11], v7, s[40:43], s55 offen {SC}
    buffer_store_dwordx4 v[8:11], v7, s[40:43], s55 offen offset:1024 {SC}
    v_lshlrev_b32 v6, 3, v1
    s_lshl_b32 s55, s2, 5
    s_add_u32 s55, s55, {WS_ML}
    s_mov_b64 exec, 0xf
    buffer_store_dwordx2 v[8:9], v6, s[40:43], s55 offen {SC}
    s_mov_b64 exec, -1
    s_and_b32 s54, s2, 7
    s_lshr_b32 s50, s2, 3
    s_lshl_b32 s55, s54, 8
    s_add_u32 s55, s55, s50
    s_lshl_b32 s55, s55, 8
    s_add_u32 s55, s55, {WS_P1}
    v_lshlrev_b32 v6, 13, v3
    v_lshl_add_u32 v6, v2, 4, v6
    buffer_store_dwordx4 v[8:11], v6, s[40:43], s55 offen {SC}
    s_add_u32 s55, s55, 32768
    buffer_store_dwordx4 v[8:11], v6, s[40:43], s55 offen {SC}
    s_cmp_lt_u32 s2, 144
    s_cbranch_scc1 L_s_noi2
    s_sub_u32 s51, s2, 144
    s_lshr_b32 s51, s51, 3
    s_lshl_b32 s55, s54, 7
    s_add_u32 s55, s55, s51
    s_lshl_b32 s55, s55, 8
    s_add_u32 s55, s55, {WS_P2}
    v_lshlrev_b32 v6, 12, v3
    v_lshl_add_u32 v6, v2, 4, v6
    buffer_store_dwordx4 v[8:11], v6, s[40:43], s55 offen {SC}
    s_add_u32 s55, s55, 16384
    buffer_store_dwordx4 v[8:11], v6, s[40:43], s55 offen {SC}
    L_s_noi2:
    s_cmp_ge_u32 s2, 184
    s_cbranch_scc1 L_s_noi3
    s_sub_u32 s61, s2, 128
    s_cmp_lt_u32 s2, 128
    s_cselect_b32 s61, s2, s61
    s_mov_b32 s52, 8192
    s_mov_b32 s53, 3584
    s_cselect_b32 s52, s52, s53
    s_cselect_b32 s53, 0, {WS_H}
    s_lshl_b32 s55, s61, 6
    s_add_u32 s53, s53, s55
    v_mul_lo_u32 v6, v14, s52
    v_lshl_add_u32 v6, v15, 3, v6
    s_cmp_lt_u32 s2, 128
    s_cbranch_scc1 L_s_noi3
    buffer_store_dwordx2 v[8:9], v6, s[40:43], s53 offen {SC}
    v_lshlrev_b32 v10, 3, v15
    buffer_load_dwordx2 v[22:23], v10, s[32:35], s55 offen
    L_s_noi3:
    s_barrier
    v_mov_b32 v13, {63*4}
    s_mov_b32 s63, {SPIN}
    L_s_pz:
    buffer_load_dword v12, v13, s[44:47], 0 offen {SC}
    s_waitcnt vmcnt(0)
    v_readfirstlane_b32 s55, v12
    s_cmp_ge_u32 s55, 8
    s_cbranch_scc1 L_s_pzd
    s_sleep {SLEEP}
    s_sub_u32 s63, s63, 1
    s_cmp_lg_u32 s63, 0
    s_cbranch_scc1 L_s_pz
    L_s_pzd:
    s_barrier
    """)
    stamp(a, 1)
    a(f"""
    s_cmp_ge_u32 s2, 184
    s_cbranch_scc1 L_s_nop1
    """)
    for w in range(8):
        a(f"ds_read_b128 v[{24+4*w}:{27+4*w}], v7 offset:{L_RED+w*1024}")
    a("s_waitcnt lgkmcnt(0)")
    for w in range(1, 8):
        for i in range(4):
            a(f"v_add_f32 v{24+i}, v{24+i}, v{24+4*w+i}")
    a(f"""
    v_cvt_pk_bf16_f32 v20, v24, v25
    v_cvt_pk_bf16_f32 v21, v26, v27
    s_cmp_lt_u32 s2, 128
    s_cbranch_scc1 L_s_pub
    s_waitcnt vmcnt(0)
    v_lshlrev_b32 v16, 16, v20
    v_and_b32 v17, 0xffff0000, v20
    v_lshlrev_b32 v18, 16, v21
    v_and_b32 v19, 0xffff0000, v21
    v_lshlrev_b32 v24, 16, v22
    v_and_b32 v25, 0xffff0000, v22
    v_lshlrev_b32 v26, 16, v23
    v_and_b32 v27, 0xffff0000, v23
    v_add_f32 v16, v16, v24
    v_add_f32 v17, v17, v25
    v_add_f32 v18, v18, v26
    v_add_f32 v19, v19, v27
    v_cvt_pk_bf16_f32 v20, v16, v17
    v_cvt_pk_bf16_f32 v21, v18, v19
    v_lshlrev_b32 v16, 16, v20
    v_and_b32 v17, 0xffff0000, v20
    v_lshlrev_b32 v18, 16, v21
    v_and_b32 v19, 0xffff0000, v21
    """)
    for i in range(4):
        gelu(a, 16+i, 24, 25)
    a(f"""
    v_cvt_pk_bf16_f32 v20, v16, v17
    v_cvt_pk_bf16_f32 v21, v18, v19
    L_s_pub:
    buffer_store_dwordx2 v[20:21], v6, s[40:43], s53 offen {SC}
    L_s_nop1:
    """)
    stamp(a, 2)
    a(f"""
    s_lshr_b32 s55, s2, 2
    s_lshl_b32 s60, s55, 10
    """)
    poll_data(a, "q", [f"buffer_load_dwordx4 v[16:19], v7, s[40:43], s60 offen {SC}"], [16, 17, 18, 19])
    stamp(a, 3)
    a(f"""
    s_and_b32 s56, s2, 15
    s_lshl_b32 s56, s56, 8
    s_add_u32 s56, s56, {WS_CNT + 16*256}
    v_mov_b32 v12, 1
    v_mov_b32 v13, s56
    s_mov_b64 exec, 1
    buffer_atomic_add v12, v13, s[40:43], 0 offen
    s_mov_b64 exec, -1
    """)
    stamp(a, 4)
    a(f"""
    ds_write_b128 v7, v[16:19] offset:{L_Q}
    s_waitcnt lgkmcnt(0)
    """)
    stamp(a, 5)
    a("s_barrier")
    stamp_flush(a, 1)
    a("L_end:\ns_endpgm")
    return kernel_head(L) + a.text() + kernel_desc(L, 168)

def main():
    out = HEADER
    out += f"; @launch grid=(256,1,1) block=(576,1,1) lds={LDS_BYTES}\n"
    out += '.amdgcn_target "amdgcn-amd-amdhsa--gfx950"\n.text\n'
    out += gen()
    open(sys.argv[1], "w").write(out)
if __name__ == "__main__":
    main()
```

```python
import sys, os
from gen_common import *
from gen_base import layernorm, silu_like, gelu, XN_STRIDE

L_XN = 0
L_RED = 8448
L_Q = 16640
L_SM = 17664
L_ORED = 0
L_OA = 17920
L_RED2 = 20480
LDS_BYTES = 28672
SC = os.environ.get("SCF", "sc0 sc1")
NT = os.environ.get("NTF", "sc1 nt")
SPIN = 2000000
WIN = int(os.environ.get("WIN", "3"))
NA = int(os.environ.get("NA", "4"))
SLEEP = int(os.environ.get("SLEEP", "1"))
STAMP = int(os.environ.get("STAMP", "0"))
WS_P1 = 0xC0000
WS_P2 = 0x140000
WS_STAMP = 0x200000
WS_CNT = 0x30000

def stamp(a, i):
    if not STAMP: return
    a(f"s_memrealtime s[80:81]\ns_waitcnt lgkmcnt(0)\ns_mov_b32 s{84+i}, s80")
def stamp_flush(a, role, n=12):
    if not STAMP: return
    a("v_mov_b32 v12, 0")
    for i in range(n):
        a(f"v_writelane_b32 v12, s{84+i}, {i}")
    a(f"""
    v_lshlrev_b32 v13, 2, v1
    s_lshl_b32 s55, s2, 7
    s_add_u32 s55, s55, {WS_STAMP + role*64}
    s_mov_b64 s[56:57], exec
    s_mov_b64 exec, 0xffff
    buffer_store_dword v12, v13, s[40:43], s55 offen
    s_mov_b64 exec, s[56:57]
    """)

def poll_data(a, tag, loads, regs, tmp=12):
    a(f"s_mov_b32 s63, {SPIN}\nL_pd_{tag}:")
    for l in loads: a(l)
    a("s_waitcnt vmcnt(0)")
    rs = list(regs)
    first = True
    a(f"v_max_u32 v{tmp}, v{rs[0]}, v{rs[1]}" if len(rs) > 1 else f"v_mov_b32 v{tmp}, v{rs[0]}")
    i = 2
    while i < len(rs):
        if i + 1 < len(rs):
            a(f"v_max3_u32 v{tmp}, v{tmp}, v{rs[i]}, v{rs[i+1]}"); i += 2
        else:
            a(f"v_max_u32 v{tmp}, v{tmp}, v{rs[i]}"); i += 1
    a(f"""
    v_cmp_eq_u32 vcc, -1, v{tmp}
    s_cmp_eq_u64 vcc, 0
    s_cbranch_scc1 L_pdd_{tag}
    s_sleep {SLEEP}
    s_sub_u32 s63, s63, 1
    s_cmp_lg_u32 s63, 0
    s_cbranch_scc1 L_pd_{tag}
    L_pdd_{tag}:
    """)

def gemv_w_issue(a, vbase, srdn, row0_sgpr):
    a(f"""
    s_and_b32 s55, s30, 3
    s_lshl_b32 s55, s55, 5
    s_add_u32 s55, s55, s{row0_sgpr}
    s_lshl_b32 s55, s55, 10
    s_and_b32 s56, s2, 7
    s_lshl_b32 s56, s56, 7
    s_add_u32 s55, s55, s56
    s_lshr_b32 s56, s30, 2
    s_lshl_b32 s56, s56, 6
    s_add_u32 s55, s55, s56
    v_lshlrev_b32 v7, 13, v3
    v_lshl_add_u32 v7, v2, 2, v7
    """)
    for j in range(4):
        a(f"buffer_load_dword v{vbase+j}, v7, s[{srdn}:{srdn+3}], s55 offen offset:{j*1024} {NT}")
    a("s_add_u32 s55, s55, 4096")
    for j in range(4):
        a(f"buffer_load_dword v{vbase+4+j}, v7, s[{srdn}:{srdn+3}], s55 offen offset:{j*1024} {NT}")

def gemv_compute(a, vw, va, out_soff_code, wait_a):
    for jj in range(4):
        a(f"v_perm_b32 v{70+jj}, v{vw+2*jj+1}, v{vw+2*jj}, s58")
        a(f"v_perm_b32 v{74+jj}, v{vw+2*jj+1}, v{vw+2*jj}, s59")
    for i in range(8):
        a(f"v_mov_b32 v{88+i}, 0")
    a(f"""
    {wait_a}
    v_mfma_f32_16x16x32_bf16 v[88:91], v[{va}:{va+3}], v[70:73], v[88:91]
    v_mfma_f32_16x16x32_bf16 v[92:95], v[{va}:{va+3}], v[74:77], v[92:95]
    v_and_b32 v7, 1, v3
    v_lshlrev_b32 v7, 10, v7
    v_lshl_add_u32 v7, v2, 3, v7
    s_and_b32 s55, s30, 3
    s_lshl_b32 s55, s55, 11
    s_lshr_b32 s56, s30, 2
    s_lshl_b32 s56, s56, 7
    s_add_u32 s55, s55, s56
    s_add_u32 s55, s55, {L_RED2}
    v_add_u32 v7, s55, v7
    s_nop 7
    """)
    for r in range(4):
        a(f"ds_write2_b32 v7, v{88+r}, v{92+r} offset0:{r*64} offset1:{r*64+1}")
    a(f"""
    s_waitcnt lgkmcnt(0)
    s_barrier
    v_lshlrev_b32 v7, 2, v0
    ds_read_b32 v64, v7 offset:{L_RED2}
    ds_read_b32 v65, v7 offset:{L_RED2+2048}
    ds_read_b32 v66, v7 offset:{L_RED2+4096}
    ds_read_b32 v67, v7 offset:{L_RED2+6144}
    v_lshlrev_b32 v68, 2, v1
    {out_soff_code}
    s_waitcnt lgkmcnt(0)
    v_add_f32 v64, v64, v65
    v_add_f32 v66, v66, v67
    v_add_f32 v64, v64, v66
    buffer_store_dword v64, v68, s[40:43], s55 offen {SC}
    """)

def gen():
    a = Asm()
    L = NAME + "_kernel"
    KB, VB, W2B, WOB = 104, 136, 16, 96
    a("s_cmp_ge_u32 s2, 256\ns_cbranch_scc1 L_end")
    prologue(a)
    a("""
    v_and_b32 v1, 63, v0
    v_lshrrev_b32 v6, 6, v0
    v_and_b32 v2, 15, v1
    v_readfirstlane_b32 s30, v6
    v_lshrrev_b32 v3, 4, v1
    s_mov_b32 s58, 0x05040100
    s_mov_b32 s59, 0x07060302
    s_waitcnt lgkmcnt(0)
    """)
    srd(a, 40, P_WS, WS_SIZE)
    srd(a, 44, P_DBG, 256)
    stamp(a, 0)
    a("s_cmp_eq_u32 s30, 8\ns_cbranch_scc1 L_service")
    a("s_cmp_ge_u32 s2, 184\ns_cbranch_scc1 L_m_nop1load")
    a("""
    s_mov_b32 s52, 8192
    s_mov_b32 s53, 3584
    s_sub_u32 s54, s2, 128
    s_cmp_lt_u32 s2, 128
    s_cselect_b32 s32, s10, s16
    s_cselect_b32 s33, s11, s17
    s_cselect_b32 s31, s52, s53
    s_cselect_b32 s54, s2, s54
    s_and_b32 s33, s33, 0xffff
    s_lshl_b32 s34, s31, 9
    s_mov_b32 s35, 0x20000
    """)
    srd(a, 36, P_X, 8192)
    a("""
    v_lshlrev_b32 v5, 4, v1
    s_lshl_b32 s55, s30, 10
    v_add_u32 v5, s55, v5
    buffer_load_dwordx4 v[32:35], v5, s[36:39], 0 offen
    v_mul_lo_u32 v4, v3, s31
    v_lshlrev_b32 v4, 3, v4
    v_lshl_add_u32 v4, v2, 2, v4
    s_mul_i32 s55, s30, s31
    s_lshl_b32 s55, s55, 6
    s_lshl_b32 s56, s54, 6
    s_add_u32 s55, s55, s56
    v_add_u32 v4, s55, v4
    s_mov_b32 s56, 0
    s_mul_i32 s57, s31, 24
    """)
    for ks in range(2):
        for j in range(8):
            a(f"buffer_load_dword v{16+ks*8+j}, v4, s[32:35], s56 offen {NT}\ns_add_u32 s56, s56, s31")
        if ks == 0:
            a("s_add_u32 s56, s56, s57")
    a("L_m_nop1load:")
    srd(a, 76, P_K, 0x4000000)
    srd(a, 64, P_V, 0x4000000)
    srd(a, 68, P_WO, 4096*1024)
    srd(a, 72, P_W2, 1792*1024)
    a("""
    s_lshr_b32 s50, s2, 2
    s_and_b32 s51, s2, 3
    s_lshl_b32 s52, s50, 20
    s_lshl_b32 s53, s51, 16
    s_add_u32 s52, s52, s53
    s_lshl_b32 s53, s30, 13
    s_add_u32 s52, s52, s53
    s_add_u32 s52, s52, 0xC0000
    s_add_u32 s53, s52, 4096
    v_lshlrev_b32 v4, 8, v2
    v_lshl_add_u32 v4, v3, 4, v4
    v_lshlrev_b32 v6, 10, v3
    v_lshl_add_u32 v6, v2, 4, v6
    """)
    stream = []
    for t in range(2):
        for ks in range(4):
            stream.append(f"buffer_load_dwordx4 v[{KB+t*16+ks*4}:{KB+3+t*16+ks*4}], v4, s[76:79], s{52+t} offen offset:{ks*64} {NT}")
    for j in range(8):
        stream.append(f"buffer_load_dwordx4 v[{VB+j*4}:{VB+3+j*4}], v6, s[64:67], s{52+(j>>2)} offen offset:{(j&3)*256} {NT}")
    for x in stream[:NA]:
        a(x)
    stamp(a, 1)
    a(f"s_cmp_ge_u32 s2, 184\ns_cbranch_scc1 L_m_nop1\ns_waitcnt vmcnt({16+NA})")
    layernorm(a, 32)
    a(f"""
    v_lshlrev_b32 v7, 4, v1
    s_mul_i32 s55, s30, {XN_STRIDE}
    v_add_u32 v7, s55, v7
    ds_write_b128 v7, v[32:35] offset:{L_XN}
    v_and_b32 v58, 7, v2
    v_mul_u32_u24 v58, {XN_STRIDE}, v58
    v_lshl_add_u32 v58, v3, 4, v58
    s_lshl_b32 s55, s30, 7
    v_add_u32 v58, s55, v58
    s_waitcnt lgkmcnt(0)
    s_barrier
    ds_read_b128 v[60:63], v58 offset:{L_XN}
    ds_read_b128 v[64:67], v58 offset:{L_XN+64}
    s_waitcnt vmcnt({NA})
    """)
    for ks in range(2):
        for jj in range(4):
            a(f"v_perm_b32 v{70+ks*8+jj}, v{16+ks*8+2*jj+1}, v{16+ks*8+2*jj}, s58")
            a(f"v_perm_b32 v{74+ks*8+jj}, v{16+ks*8+2*jj+1}, v{16+ks*8+2*jj}, s59")
    for i in range(8):
        a(f"v_mov_b32 v{88+i}, 0")
    a(f"""
    s_waitcnt lgkmcnt(0)
    v_mfma_f32_16x16x32_bf16 v[88:91], v[60:63], v[70:73], v[88:91]
    v_mfma_f32_16x16x32_bf16 v[92:95], v[60:63], v[74:77], v[92:95]
    v_mfma_f32_16x16x32_bf16 v[88:91], v[64:67], v[78:81], v[88:91]
    v_mfma_f32_16x16x32_bf16 v[92:95], v[64:67], v[82:85], v[92:95]
    v_and_b32 v7, 1, v3
    v_lshlrev_b32 v7, 9, v7
    v_lshl_add_u32 v7, v2, 3, v7
    s_lshl_b32 s55, s30, 10
    s_add_u32 s55, s55, {L_RED}
    v_add_u32 v7, s55, v7
    s_nop 7
    """)
    for r in range(4):
        a(f"ds_write2_b32 v7, v{88+r}, v{92+r} offset0:{r*32} offset1:{r*32+1}")
    a("""
    s_waitcnt lgkmcnt(0)
    s_barrier
    s_branch L_m_p1done
    L_m_nop1:
    s_barrier
    s_barrier
    L_m_p1done:
    """)
    stamp(a, 2)
    LATE = int(os.environ.get("LATE", "0"))
    if LATE: a("s_barrier")
    for x in stream[NA:]:
        a(f"s_waitcnt vmcnt({WIN-1})\n" + x)
    a("s_lshr_b32 s61, s2, 3\ns_lshl_b32 s61, s61, 7")
    gemv_w_issue(a, WOB, 68, 61)
    a("""
    s_cmp_lt_u32 s2, 144
    s_cbranch_scc1 L_m_now2load
    s_sub_u32 s61, s2, 144
    s_lshr_b32 s61, s61, 3
    s_lshl_b32 s61, s61, 7
    """)
    gemv_w_issue(a, W2B, 72, 61)
    a("L_m_now2load:")
    if not LATE: a("s_barrier")
    stamp(a, 3)
    a(f"""
    v_and_b32 v5, 3, v2
    v_lshlrev_b32 v5, 8, v5
    v_lshl_add_u32 v5, v3, 4, v5
    """)
    for ks in range(4):
        a(f"ds_read_b128 v[{48+ks*4}:{51+ks*4}], v5 offset:{L_Q+ks*64}")
    S = 40
    for i in range(8):
        a(f"v_mov_b32 v{S+i}, 0")
    a("""
    s_cmp_lt_u32 s2, 144
    s_cbranch_scc1 L_m_wk0
    s_waitcnt vmcnt(24) lgkmcnt(0)
    s_branch L_m_wk1
    L_m_wk0:
    s_waitcnt vmcnt(16) lgkmcnt(0)
    L_m_wk1:
    """)
    for t in range(2):
        for ks in range(4):
            a(f"v_mfma_f32_16x16x32_bf16 v[{S+t*4}:{S+3+t*4}], v[{KB+t*16+ks*4}:{KB+3+t*16+ks*4}], v[{48+ks*4}:{51+ks*4}], v[{S+t*4}:{S+3+t*4}]")
    stamp(a, 4)
    a("s_nop 7\ns_nop 1\ns_mov_b32 s55, 0x3db504f3")
    for i in range(4):
        a(f"""
        v_cvt_pk_bf16_f32 v{64+i}, v{S+2*i}, v{S+1+2*i}
        v_lshlrev_b32 v{S+2*i}, 16, v{64+i}
        v_and_b32 v{S+1+2*i}, 0xffff0000, v{64+i}
        v_mul_f32 v{S+2*i}, s55, v{S+2*i}
        v_mul_f32 v{S+1+2*i}, s55, v{S+1+2*i}
        v_cvt_pk_bf16_f32 v{64+i}, v{S+2*i}, v{S+1+2*i}
        v_lshlrev_b32 v{S+2*i}, 16, v{64+i}
        v_and_b32 v{S+1+2*i}, 0xffff0000, v{64+i}
        """)
    a(f"""
    v_max3_f32 v68, v{S}, v{S+1}, v{S+2}
    v_max3_f32 v68, v68, v{S+3}, v{S+4}
    v_max3_f32 v68, v68, v{S+5}, v{S+6}
    v_max_f32 v68, v68, v{S+7}
    """)
    xg_reduce(a, 68, 69, "v_max_f32")
    a(f"""
    v_and_b32 v70, 3, v2
    v_lshlrev_b32 v70, 5, v70
    s_lshl_b32 s55, s30, 2
    v_add_u32 v71, s55, v70
    ds_write_b32 v71, v68 offset:{L_SM}
    s_waitcnt lgkmcnt(0)
    s_barrier
    ds_read_b128 v[72:75], v70 offset:{L_SM}
    ds_read_b128 v[76:79], v70 offset:{L_SM+16}
    s_waitcnt lgkmcnt(0)
    v_max3_f32 v68, v72, v73, v74
    v_max3_f32 v68, v68, v75, v76
    v_max3_f32 v68, v68, v77, v78
    v_max_f32 v68, v68, v79
    s_mov_b32 s55, 0x3fb8aa3b
    """)
    for i in range(8):
        a(f"v_sub_f32 v{S+i}, v{S+i}, v68\nv_mul_f32 v{S+i}, s55, v{S+i}\nv_exp_f32 v{S+i}, v{S+i}")
    a(f"s_nop 0\nv_add_f32 v84, v{S}, v{S+1}")
    for i in range(2, 8):
        a(f"v_add_f32 v84, v84, v{S+i}")
    for i in range(4):
        a(f"v_cvt_pk_bf16_f32 v{80+i}, v{S+2*i}, v{S+1+2*i}")
    xg_reduce(a, 84, 85, "v_add_f32")
    a(f"ds_write_b32 v71, v84 offset:{L_SM+128}")
    a("""
    s_cmp_lt_u32 s2, 144
    s_cbranch_scc1 L_m_wv0
    s_waitcnt vmcnt(16)
    s_branch L_m_wv1
    L_m_wv0:
    s_waitcnt vmcnt(8)
    L_m_wv1:
    """)
    stamp(a, 5)
    for e in range(8):
        for jj in range(4):
            a(f"v_perm_b32 v{KB+e*4+jj}, v{VB+(2*jj+1)*4+(e>>1)}, v{VB+(2*jj)*4+(e>>1)}, s{58+(e&1)}")
    a("s_nop 1")
    for e in range(8):
        a(f"v_mfma_f32_16x16x32_bf16 v[{32+e*4}:{35+e*4}], v[80:83], v[{KB+e*4}:{KB+3+e*4}], 0")
    a("s_nop 7\ns_nop 1")
    for r in range(4):
        for e in range(8):
            a(f"v_mov_b32 v{64+r*8+e}, v{32+e*4+r}")
    a("""
    v_lshlrev_b32 v24, 5, v2
    s_lshl_b32 s55, s30, 11
    v_add_u32 v24, s55, v24
    v_cmp_gt_u32 vcc, 16, v1
    s_and_saveexec_b64 s[56:57], vcc
    """)
    for r in range(4):
        a(f"ds_write_b128 v24, v[{64+r*8}:{67+r*8}] offset:{L_ORED+r*512}\nds_write_b128 v24, v[{68+r*8}:{71+r*8}] offset:{L_ORED+r*512+16}")
    a(f"""
    s_mov_b64 exec, s[56:57]
    s_waitcnt lgkmcnt(0)
    s_barrier
    s_cmp_ge_u32 s30, 2
    s_cbranch_scc1 L_m_ml
    v_lshlrev_b32 v25, 4, v0
    """)
    for w in range(8):
        a(f"ds_read_b128 v[{32+4*w}:{35+4*w}], v25 offset:{L_ORED+w*2048}")
    a("s_waitcnt lgkmcnt(0)")
    for w in range(1, 8):
        for i in range(4):
            a(f"v_add_f32 v{32+i}, v{32+i}, v{32+4*w+i}")
    a(f"""
    s_lshl_b32 s55, s2, 11
    s_add_u32 s55, s55, {WS_O}
    buffer_store_dwordx4 v[32:35], v25, s[40:43], s55 offen {SC}
    s_branch L_m_pub
    L_m_ml:
    s_cmp_lg_u32 s30, 2
    s_cbranch_scc1 L_m_pub
    v_and_b32 v28, 3, v1
    v_lshlrev_b32 v28, 5, v28
    ds_read_b128 v[32:35], v28 offset:{L_SM}
    ds_read_b128 v[36:39], v28 offset:{L_SM+16}
    ds_read_b128 v[40:43], v28 offset:{L_SM+128}
    ds_read_b128 v[44:47], v28 offset:{L_SM+144}
    s_waitcnt lgkmcnt(0)
    v_max3_f32 v26, v32, v33, v34
    v_max3_f32 v26, v26, v35, v36
    v_max3_f32 v26, v26, v37, v38
    v_max_f32 v26, v26, v39
    v_add_f32 v27, v40, v41
    v_add_f32 v27, v27, v42
    v_add_f32 v27, v27, v43
    v_add_f32 v27, v27, v44
    v_add_f32 v27, v27, v45
    v_add_f32 v27, v27, v46
    v_add_f32 v27, v27, v47
    v_lshlrev_b32 v28, 3, v1
    s_lshl_b32 s55, s2, 5
    s_add_u32 s55, s55, {WS_ML}
    v_cmp_gt_u32 vcc, 4, v1
    s_and_saveexec_b64 s[56:57], vcc
    buffer_store_dwordx2 v[26:27], v28, s[40:43], s55 offen {SC}
    s_mov_b64 exec, s[56:57]
    L_m_pub:
    """)
    stamp(a, 6)
    a(f"""
    v_lshlrev_b32 v13, 8, v2
    v_add_u32 v13, {WS_CNT + 16*256}, v13
    s_mov_b32 s63, {SPIN}
    L_m_ib:
    buffer_load_dword v12, v13, s[40:43], 0 offen {SC}
    s_waitcnt vmcnt(0)
    v_cmp_gt_u32 vcc, 16, v12
    s_cmp_eq_u64 vcc, 0
    s_cbranch_scc1 L_m_ibd
    s_sleep {SLEEP}
    s_sub_u32 s63, s63, 1
    s_cmp_lg_u32 s63, 0
    s_cbranch_scc1 L_m_ib
    L_m_ibd:
    """)
    a(f"""
    s_and_b32 s54, s2, 7
    s_cmp_lt_u32 s2, 144
    s_cbranch_scc1 L_m_now2
    s_sub_u32 s61, s2, 144
    s_lshr_b32 s61, s61, 3
    v_and_b32 v5, 7, v2
    v_mul_u32_u24 v5, 3584, v5
    v_lshl_add_u32 v5, v3, 4, v5
    s_lshl_b32 s60, s61, 8
    s_and_b32 s56, s30, 3
    s_lshl_b32 s56, s56, 6
    s_add_u32 s60, s60, s56
    s_add_u32 s60, s60, {WS_H}
    """)
    poll_data(a, "h", [f"buffer_load_dwordx4 v[60:63], v5, s[40:43], s60 offen {SC}"], [60, 61, 62, 63])
    gemv_compute(a, W2B, 60, f"""s_lshl_b32 s55, s54, 3
    s_add_u32 s55, s55, s30
    s_lshl_b32 s55, s55, 4
    s_add_u32 s55, s55, s61
    s_lshl_b32 s55, s55, 8
    s_add_u32 s55, s55, {WS_P2}""", "")
    a("L_m_now2:")
    stamp(a, 7)
    a(f"""
    s_lshr_b32 s50, s2, 3
    s_lshl_b32 s55, s30, 5
    s_lshr_b32 s56, s50, 2
    s_lshl_b32 s56, s56, 2
    s_add_u32 s55, s55, s56
    s_and_b32 s57, s50, 3
    s_lshl_b32 s60, s55, 11
    s_lshl_b32 s61, s57, 9
    s_add_u32 s60, s60, s61
    s_add_u32 s60, s60, {WS_O}
    s_add_u32 s62, s60, 4096
    s_lshl_b32 s61, s55, 5
    s_lshl_b32 s56, s57, 3
    s_add_u32 s61, s61, s56
    s_add_u32 s61, s61, {WS_ML}
    v_lshlrev_b32 v5, 3, v1
    v_mov_b32 v6, 0
    """)
    lds = []
    for c in range(4):
        lds.append(f"buffer_load_dwordx2 v[{32+2*c}:{33+2*c}], v5, s[40:43], s{60 if c < 2 else 62} offen offset:{(c&1)*2048} {SC}")
    for c in range(4):
        lds.append(f"buffer_load_dwordx2 v[{40+2*c}:{41+2*c}], v6, s[40:43], s61 offen offset:{c*32} {SC}")
    poll_data(a, "o", lds, list(range(32, 48)))
    stamp(a, 8)
    a("""
    v_max3_f32 v48, v40, v42, v44
    v_max_f32 v48, v48, v46
    s_mov_b32 s55, 0x3fb8aa3b
    """)
    for c in range(4):
        a(f"v_sub_f32 v{50+c}, v{40+2*c}, v48\nv_mul_f32 v{50+c}, s55, v{50+c}\nv_exp_f32 v{50+c}, v{50+c}")
    a(f"""
    s_nop 0
    v_mul_f32 v49, v50, v41
    v_fmac_f32 v49, v51, v43
    v_fmac_f32 v49, v52, v45
    v_fmac_f32 v49, v53, v47
    v_mul_f32 v54, v50, v32
    v_mul_f32 v55, v50, v33
    v_fmac_f32 v54, v51, v34
    v_fmac_f32 v55, v51, v35
    v_fmac_f32 v54, v52, v36
    v_fmac_f32 v55, v52, v37
    v_fmac_f32 v54, v53, v38
    v_fmac_f32 v55, v53, v39
    v_rcp_f32 v49, v49
    s_nop 0
    v_mul_f32 v54, v54, v49
    v_mul_f32 v55, v55, v49
    v_cvt_pk_bf16_f32 v54, v54, v55
    s_mul_i32 s55, s30, 272
    v_lshlrev_b32 v5, 2, v1
    v_add_u32 v5, s55, v5
    ds_write_b32 v5, v54 offset:{L_OA}
    v_and_b32 v5, 7, v2
    v_mul_u32_u24 v5, 272, v5
    v_lshl_add_u32 v5, v3, 4, v5
    s_and_b32 s55, s30, 3
    s_lshl_b32 s55, s55, 6
    v_add_u32 v5, s55, v5
    s_waitcnt lgkmcnt(0)
    s_barrier
    ds_read_b128 v[60:63], v5 offset:{L_OA}
    """)
    stamp(a, 9)
    gemv_compute(a, WOB, 60, f"""s_lshl_b32 s55, s54, 3
    s_add_u32 s55, s55, s30
    s_lshl_b32 s55, s55, 5
    s_add_u32 s55, s55, s50
    s_lshl_b32 s55, s55, 8
    s_add_u32 s55, s55, {WS_P1}""", "s_waitcnt vmcnt(0) lgkmcnt(0)")
    stamp(a, 10)
    a(f"""
    s_cmp_lg_u32 s30, 0
    s_cbranch_scc1 L_end
    s_cmp_ge_u32 s2, 64
    s_cbranch_scc1 L_m_fin
    s_lshr_b32 s50, s2, 3
    s_lshl_b32 s55, s54, 3
    s_add_u32 s55, s55, s50
    s_lshl_b32 s60, s55, 13
    s_add_u32 s60, s60, {WS_P1}
    s_add_u32 s61, s60, 4096
    s_lshl_b32 s62, s55, 12
    s_add_u32 s62, s62, {WS_P2}
    v_lshlrev_b32 v5, 4, v1
    v_mov_b32 v60, 0
    v_mov_b32 v61, 0
    v_mov_b32 v62, 0
    v_mov_b32 v63, 0
    """)
    srd(a, 32, P_X, 8192)
    srd(a, 36, P_B2, 1024)
    srd(a, 76, P_OUT, 8192)
    a(f"""
    v_lshlrev_b32 v6, 3, v2
    s_lshl_b32 s57, s54, 7
    s_lshl_b32 s51, s50, 10
    s_add_u32 s51, s51, s57
    buffer_load_dwordx2 v[64:65], v6, s[32:35], s51 offen
    buffer_load_dwordx2 v[66:67], v6, s[36:39], s57 offen
    """)
    lds = []
    for i in range(8):
        lds.append(f"buffer_load_dwordx4 v[{16+4*i}:{19+4*i}], v5, s[40:43], s{60 + (i>>2)} offen offset:{(i&3)*1024} {SC}")
    for i in range(3):
        lds.append(f"buffer_load_dwordx4 v[{48+4*i}:{51+4*i}], v5, s[40:43], s62 offen offset:{i*1024} {SC}")
    lds.append(f"s_mov_b32 exec_hi, 0\nbuffer_load_dwordx4 v[60:63], v5, s[40:43], s62 offen offset:3072 {SC}\ns_mov_b64 exec, -1")
    poll_data(a, "f", lds, list(range(16, 64)))
    for i in range(1, 8):
        for k in range(4):
            a(f"v_add_f32 v{16+k}, v{16+k}, v{16+4*i+k}")
    for i in range(1, 4):
        for k in range(4):
            a(f"v_add_f32 v{48+k}, v{48+k}, v{48+4*i+k}")
    for k in range(4):
        xg_reduce(a, 16+k, 12, "v_add_f32")
        xg_reduce(a, 48+k, 12, "v_add_f32")
    for i in range(2):
        a(f"""
        v_cvt_pk_bf16_f32 v40, v{16+2*i}, v{17+2*i}
        v_lshlrev_b32 v41, 16, v40
        v_and_b32 v42, 0xffff0000, v40
        v_cvt_pk_bf16_f32 v40, v{48+2*i}, v{49+2*i}
        v_lshlrev_b32 v43, 16, v40
        v_and_b32 v44, 0xffff0000, v40
        v_lshlrev_b32 v45, 16, v{66+i}
        v_and_b32 v46, 0xffff0000, v{66+i}
        v_add_f32 v43, v43, v45
        v_add_f32 v44, v44, v46
        v_cvt_pk_bf16_f32 v40, v43, v44
        v_lshlrev_b32 v43, 16, v40
        v_and_b32 v44, 0xffff0000, v40
        """)
        silu_like(a, 43, 43, 45, "0xbfb8aa3b")
        silu_like(a, 44, 44, 45, "0xbfb8aa3b")
        a(f"""
        v_cvt_pk_bf16_f32 v40, v43, v44
        v_lshlrev_b32 v43, 16, v40
        v_and_b32 v44, 0xffff0000, v40
        v_mul_f32 v41, v41, v43
        v_mul_f32 v42, v42, v44
        v_cvt_pk_bf16_f32 v40, v41, v42
        v_lshlrev_b32 v41, 16, v40
        v_and_b32 v42, 0xffff0000, v40
        v_lshlrev_b32 v45, 16, v{64+i}
        v_and_b32 v46, 0xffff0000, v{64+i}
        v_add_f32 v41, v41, v45
        v_add_f32 v42, v42, v46
        v_cvt_pk_bf16_f32 v{68+i}, v41, v42
        """)
    a("""
    s_mov_b64 exec, 0xffff
    buffer_store_dwordx2 v[68:69], v6, s[76:79], s51 offen
    s_mov_b64 exec, -1
    L_m_fin:
    """)
    stamp(a, 11)
    stamp_flush(a, 0)
    a("s_branch L_end")
    a("L_service:")
    srd(a, 32, P_B1, 3584)
    a(f"""
    s_cmp_lt_u32 s2, 184
    s_cbranch_scc1 L_s_nozero
    s_sub_u32 s62, s2, 184
    s_cmp_ge_u32 s62, 8
    s_cbranch_scc1 L_s_nozero
    v_mov_b32 v8, 0
    v_lshlrev_b32 v7, 8, v1
    s_mov_b32 s55, {WS_CNT}
    s_cmp_lg_u32 s62, 0
    s_cbranch_scc1 L_s_noz0
    buffer_store_dword v8, v7, s[40:43], s55 offen {SC}
    L_s_noz0:
    v_mov_b32 v8, -1
    v_mov_b32 v9, -1
    v_mov_b32 v10, -1
    v_mov_b32 v11, -1
    v_lshlrev_b32 v7, 4, v1
    s_lshl_b32 s55, s62, 13
    s_add_u32 s56, s55, 4096
    buffer_store_dwordx4 v[8:11], v7, s[40:43], s55 offen {SC}
    buffer_store_dwordx4 v[8:11], v7, s[40:43], s55 offen offset:1024 {SC}
    buffer_store_dwordx4 v[8:11], v7, s[40:43], s55 offen offset:2048 {SC}
    buffer_store_dwordx4 v[8:11], v7, s[40:43], s55 offen offset:3072 {SC}
    buffer_store_dwordx4 v[8:11], v7, s[40:43], s56 offen {SC}
    buffer_store_dwordx4 v[8:11], v7, s[40:43], s56 offen offset:1024 {SC}
    buffer_store_dwordx4 v[8:11], v7, s[40:43], s56 offen offset:2048 {SC}
    buffer_store_dwordx4 v[8:11], v7, s[40:43], s56 offen offset:3072 {SC}
    s_waitcnt vmcnt(0)
    v_mov_b32 v13, {63*4}
    v_mov_b32 v12, 1
    s_mov_b64 exec, 1
    buffer_atomic_add v12, v13, s[44:47], 0 offen
    s_mov_b64 exec, -1
    L_s_nozero:
    v_mov_b32 v8, -1
    v_mov_b32 v9, -1
    v_mov_b32 v10, -1
    v_mov_b32 v11, -1
    v_lshrrev_b32 v14, 3, v1
    v_and_b32 v15, 7, v1
    v_lshlrev_b32 v7, 4, v1
    s_lshl_b32 s55, s2, 11
    s_add_u32 s55, s55, {WS_O}
    buffer_store_dwordx4 v[8:11], v7, s[40:43], s55 offen {SC}
    buffer_store_dwordx4 v[8:11], v7, s[40:43], s55 offen offset:1024 {SC}
    v_lshlrev_b32 v6, 3, v1
    s_lshl_b32 s55, s2, 5
    s_add_u32 s55, s55, {WS_ML}
    s_mov_b64 exec, 0xf
    buffer_store_dwordx2 v[8:9], v6, s[40:43], s55 offen {SC}
    s_mov_b64 exec, -1
    s_and_b32 s54, s2, 7
    s_lshr_b32 s50, s2, 3
    s_lshl_b32 s55, s54, 8
    s_add_u32 s55, s55, s50
    s_lshl_b32 s55, s55, 8
    s_add_u32 s55, s55, {WS_P1}
    v_lshlrev_b32 v6, 13, v3
    v_lshl_add_u32 v6, v2, 4, v6
    buffer_store_dwordx4 v[8:11], v6, s[40:43], s55 offen {SC}
    s_add_u32 s55, s55, 32768
    buffer_store_dwordx4 v[8:11], v6, s[40:43], s55 offen {SC}
    s_cmp_lt_u32 s2, 144
    s_cbranch_scc1 L_s_noi2
    s_sub_u32 s51, s2, 144
    s_lshr_b32 s51, s51, 3
    s_lshl_b32 s55, s54, 7
    s_add_u32 s55, s55, s51
    s_lshl_b32 s55, s55, 8
    s_add_u32 s55, s55, {WS_P2}
    v_lshlrev_b32 v6, 12, v3
    v_lshl_add_u32 v6, v2, 4, v6
    buffer_store_dwordx4 v[8:11], v6, s[40:43], s55 offen {SC}
    s_add_u32 s55, s55, 16384
    buffer_store_dwordx4 v[8:11], v6, s[40:43], s55 offen {SC}
    L_s_noi2:
    s_cmp_ge_u32 s2, 184
    s_cbranch_scc1 L_s_noi3
    s_sub_u32 s61, s2, 128
    s_cmp_lt_u32 s2, 128
    s_cselect_b32 s61, s2, s61
    s_mov_b32 s52, 8192
    s_mov_b32 s53, 3584
    s_cselect_b32 s52, s52, s53
    s_cselect_b32 s53, 0, {WS_H}
    s_lshl_b32 s55, s61, 6
    s_add_u32 s53, s53, s55
    v_mul_lo_u32 v6, v14, s52
    v_lshl_add_u32 v6, v15, 3, v6
    s_cmp_lt_u32 s2, 128
    s_cbranch_scc1 L_s_noi3
    buffer_store_dwordx2 v[8:9], v6, s[40:43], s53 offen {SC}
    v_lshlrev_b32 v10, 3, v15
    buffer_load_dwordx2 v[22:23], v10, s[32:35], s55 offen
    L_s_noi3:
    s_barrier
    v_mov_b32 v13, {63*4}
    s_mov_b32 s63, {SPIN}
    L_s_pz:
    buffer_load_dword v12, v13, s[44:47], 0 offen {SC}
    s_waitcnt vmcnt(0)
    v_readfirstlane_b32 s55, v12
    s_cmp_ge_u32 s55, 8
    s_cbranch_scc1 L_s_pzd
    s_sleep {SLEEP}
    s_sub_u32 s63, s63, 1
    s_cmp_lg_u32 s63, 0
    s_cbranch_scc1 L_s_pz
    L_s_pzd:
    s_and_b32 s56, s2, 15
    s_lshl_b32 s56, s56, 8
    s_add_u32 s56, s56, {WS_CNT + 16*256}
    v_mov_b32 v12, 1
    v_mov_b32 v13, s56
    s_mov_b64 exec, 1
    buffer_atomic_add v12, v13, s[40:43], 0 offen
    s_mov_b64 exec, -1
    s_barrier
    """)
    stamp(a, 1)
    a(f"""
    s_cmp_ge_u32 s2, 184
    s_cbranch_scc1 L_s_nop1
    """)
    for w in range(8):
        a(f"ds_read_b128 v[{24+4*w}:{27+4*w}], v7 offset:{L_RED+w*1024}")
    a("s_waitcnt lgkmcnt(0)")
    for w in range(1, 8):
        for i in range(4):
            a(f"v_add_f32 v{24+i}, v{24+i}, v{24+4*w+i}")
    a(f"""
    v_cvt_pk_bf16_f32 v20, v24, v25
    v_cvt_pk_bf16_f32 v21, v26, v27
    s_cmp_lt_u32 s2, 128
    s_cbranch_scc1 L_s_pub
    s_waitcnt vmcnt(0)
    v_lshlrev_b32 v16, 16, v20
    v_and_b32 v17, 0xffff0000, v20
    v_lshlrev_b32 v18, 16, v21
    v_and_b32 v19, 0xffff0000, v21
    v_lshlrev_b32 v24, 16, v22
    v_and_b32 v25, 0xffff0000, v22
    v_lshlrev_b32 v26, 16, v23
    v_and_b32 v27, 0xffff0000, v23
    v_add_f32 v16, v16, v24
    v_add_f32 v17, v17, v25
    v_add_f32 v18, v18, v26
    v_add_f32 v19, v19, v27
    v_cvt_pk_bf16_f32 v20, v16, v17
    v_cvt_pk_bf16_f32 v21, v18, v19
    v_lshlrev_b32 v16, 16, v20
    v_and_b32 v17, 0xffff0000, v20
    v_lshlrev_b32 v18, 16, v21
    v_and_b32 v19, 0xffff0000, v21
    """)
    for i in range(4):
        gelu(a, 16+i, 24, 25)
    a(f"""
    v_cvt_pk_bf16_f32 v20, v16, v17
    v_cvt_pk_bf16_f32 v21, v18, v19
    L_s_pub:
    buffer_store_dwordx2 v[20:21], v6, s[40:43], s53 offen {SC}
    L_s_nop1:
    """)
    stamp(a, 2)
    a(f"""
    s_lshr_b32 s55, s2, 2
    s_lshl_b32 s60, s55, 10
    """)
    a(f"""
    v_lshlrev_b32 v13, 8, v2
    v_add_u32 v13, {WS_CNT + 16*256}, v13
    s_mov_b32 s63, {SPIN}
    L_pd_q:
    buffer_load_dwordx4 v[16:19], v7, s[40:43], s60 offen {SC}
    s_waitcnt vmcnt(0)
    v_max_u32 v12, v16, v17
    v_max3_u32 v12, v12, v18, v19
    v_cmp_eq_u32 vcc, -1, v12
    s_cmp_eq_u64 vcc, 0
    s_cbranch_scc1 L_pdd_q
    s_sleep {SLEEP}
    s_sub_u32 s63, s63, 1
    s_cmp_lg_u32 s63, 0
    s_cbranch_scc1 L_pd_q
    L_pdd_q:
    """)
    stamp(a, 3)
    stamp(a, 4)
    a(f"""
    ds_write_b128 v7, v[16:19] offset:{L_Q}
    s_waitcnt lgkmcnt(0)
    """)
    stamp(a, 5)
    a("s_barrier")
    stamp_flush(a, 1)
    a("L_end:\ns_endpgm")
    return kernel_head(L) + a.text() + kernel_desc(L, 168)

def main():
    out = HEADER
    out += f"; @launch grid=(256,1,1) block=(576,1,1) lds={LDS_BYTES}\n"
    out += '.amdgcn_target "amdgcn-amd-amdhsa--gfx950"\n.text\n'
    out += gen()
    open(sys.argv[1], "w").write(out)
if __name__ == "__main__":
    main()
```
